```python
import torch

def _softmax(x, axis=-1):
    return torch.softmax(x, dim=axis)
def _gelu(x):
    return torch.nn.functional.gelu(x, approximate="tanh")
def _silu(x):
    return torch.nn.functional.silu(x)
def _sigmoid(x):
    return torch.sigmoid(x)
def _layernorm(x, axis=-1, eps=1e-5):
    m = x.mean(dim=axis, keepdim=True)
    v = x.var(dim=axis, keepdim=True, unbiased=False)
    return (x - m) / torch.sqrt(v + eps)
def _scatter_add(tgt, idx, src, axis=0):
    return tgt.clone().index_add_(axis, idx, src)
def _segment_sum(src, seg, n):
    out = torch.zeros((n,) + src.shape[1:], dtype=src.dtype)
    return out.index_add_(0, seg, src)
def _pad(x, pw):
    flat = tuple(v for pair in reversed(pw) for v in pair)
    return torch.nn.functional.pad(x, flat)

kernel_name = 'standalone__kv_cache_quant_int4_int2_kv_with_per_channel_or_per_token_scales__prompt'

def setup_inputs():

    _w = (lambda a: (lambda t: t.to(torch.bfloat16) if t.is_floating_point() else t)(torch.as_tensor(a)))
    B = 1
    Sq = 2048
    Skv = 2048
    Hq = 32
    Hkv = 8
    Dh = 128
    bits = 8
    G = 64
    if G <= 0 or G >= Skv:
        G = max(1, Skv // 2)
    Skv = (Skv // G) * G
    ngk = Skv // G
    qmax = (1 << bits) - 1
    return {
        "q": _w((lambda *s: torch.randn(*s, dtype=torch.bfloat16) * 0.2)(B, Hq, Sq, Dh)),
        "qk": _w(torch.randint(0, qmax + 1, (B, Hkv, Skv, Dh)).to(torch.int32)),
        "qv": _w(torch.randint(0, qmax + 1, (B, Hkv, Skv, Dh)).to(torch.int32)),
        "k_scales": _w(torch.abs((lambda *s: torch.randn(*s, dtype=torch.bfloat16) * 0.2)(B, Hkv, ngk, Dh)) * 0.05 + 0.02),
        "k_zeros": _w((lambda *s: torch.randn(*s, dtype=torch.bfloat16) * 0.2)(B, Hkv, ngk, Dh) + float(qmax) / 2.0),
        "v_scales": _w(torch.abs((lambda *s: torch.randn(*s, dtype=torch.bfloat16) * 0.05)(B, Hkv, Skv, 1)) * 0.05 + 0.02),
        "v_zeros": _w((lambda *s: torch.randn(*s, dtype=torch.bfloat16) * 0.05)(B, Hkv, Skv, 1) + float(qmax) / 2.0),
    }

def reference(q, qk, qv, k_scales, k_zeros, v_scales, v_zeros):
    B, Hq, Sq, Dh = q.shape
    Hkv, Skv = qk.shape[1], qk.shape[2]
    ngk = k_scales.shape[2]
    G = Skv // ngk
    ks = (lambda x, n, axis: torch.repeat_interleave(x, n, dim=axis))(k_scales, G, axis=2)
    kz = (lambda x, n, axis: torch.repeat_interleave(x, n, dim=axis))(k_zeros, G, axis=2)
    k = ((lambda x, dt: x.to(dt))(qk, q.dtype) - kz) * ks
    v = ((lambda x, dt: x.to(dt))(qv, q.dtype) - v_zeros) * v_scales
    rep = Hq // Hkv
    if rep > 1:
        k = (lambda x, n, axis: torch.repeat_interleave(x, n, dim=axis))(k, rep, axis=1)
        v = (lambda x, n, axis: torch.repeat_interleave(x, n, dim=axis))(v, rep, axis=1)
    scale = float(Dh) ** -0.5
    logits = torch.einsum("bhqd,bhkd->bhqk", q, k) * scale
    p = _softmax(logits, axis=-1)
    o = torch.einsum("bhqk,bhkd->bhqd", p, v)
    return o
```

```python
import math
import struct
import sys

NAME = "standalone__kv_cache_quant_int4_int2_kv_with_per_channel_or_per_token_scales__prompt"
OUT = f"cdna_kernels/{NAME}.s"

HEADER = """; Kernarg layout for this problem (80 bytes, ptrs only, base s[0:1]):
;
"""


def f32bits(x):
    return struct.unpack("<I", struct.pack("<f", x))[0]


class Asm:
    def __init__(self):
        self.lines = []

    def __call__(self, s):
        self.lines.append("    " + s)

    def label(self, s):
        self.lines.append(s + ":")

    def raw(self, s):
        self.lines.append(s)

    def text(self):
        return "\n".join(self.lines) + "\n"


def srd(a, d, base, nbytes):
    a(f"s_mov_b32 s{d}, s{base}")
    a(f"s_and_b32 s{d+1}, s{base+1}, 0xffff")
    a(f"s_mov_b32 s{d+2}, {nbytes:#x}")
    a(f"s_mov_b32 s{d+3}, 0x00020000")


def gen_prepass(a):
    CS = f32bits(math.log2(math.e) / math.sqrt(128.0))
    a.raw(".p2align 8")
    a.raw(".globl kvq_dequant_kernel")
    a.raw(".type kvq_dequant_kernel,@function")
    a.label("kvq_dequant_kernel")
    a("s_cmp_ge_u32 s2, 512")
    a("s_cbranch_scc1 L_pp_done")
    a("s_load_dwordx4 s[4:7], s[0:1], 8")
    a("s_load_dwordx4 s[8:11], s[0:1], 24")
    a("s_load_dwordx4 s[12:15], s[0:1], 40")
    a("s_load_dwordx2 s[16:17], s[0:1], 72")
    a("v_lshrrev_b32 v1, 6, v0")
    a("v_and_b32 v2, 63, v0")
    a("v_and_b32 v3, 31, v0")
    a("v_readfirstlane_b32 s18, v1")
    a("v_lshrrev_b32 v4, 5, v2")
    a("s_and_b32 s19, s2, 7")
    a("s_lshr_b32 s20, s2, 3")
    a("s_lshr_b32 s21, s20, 1")
    a("s_and_b32 s22, s20, 1")
    a("s_lshl_b32 s23, s19, 5")
    a("s_add_u32 s23, s23, s21")
    a("s_waitcnt lgkmcnt(0)")
    srd(a, 24, 16, 0x10000000)
    srd(a, 28, 4, 0x800000)
    srd(a, 32, 6, 0x800000)
    srd(a, 36, 8, 0x10000)
    srd(a, 40, 10, 0x10000)
    srd(a, 44, 12, 0x8000)
    srd(a, 48, 14, 0x8000)
    a("s_mov_b32 s52, 0xffff0000")
    a(f"s_mov_b32 s53, {CS:#x}")
    a("s_cmp_eq_u32 s22, 1")
    a("s_cbranch_scc1 L_pp_v")
    a("s_lshr_b32 s54, s18, 1")
    a("s_and_b32 s55, s18, 1")
    a("s_lshl_b32 s56, s23, 6")
    a("s_lshl_b32 s57, s54, 5")
    a("s_add_u32 s56, s56, s57")
    a("s_lshl_b32 s56, s56, 9")
    a("s_lshl_b32 s57, s55, 8")
    a("s_add_u32 s56, s56, s57")
    a("v_lshlrev_b32 v5, 9, v3")
    a("v_lshl_add_u32 v5, v4, 5, v5")
    a("s_lshl_b32 s58, s23, 8")
    a("s_lshl_b32 s57, s55, 7")
    a("s_add_u32 s58, s58, s57")
    a("v_lshlrev_b32 v6, 4, v4")
    a("s_lshl_b32 s59, s23, 15")
    a("s_lshl_b32 s57, s54, 13")
    a("s_add_u32 s59, s59, s57")
    a("s_lshl_b32 s57, s55, 12")
    a("s_add_u32 s59, s59, s57")
    a("v_lshlrev_b32 v7, 4, v2")
    D = 16
    SC = 48
    ZR = 64
    for i in range(4):
        a(f"buffer_load_dwordx4 v[{D+8*i}:{D+8*i+3}], v5, s[28:31], s56 offen offset:{64*i}")
        a(f"buffer_load_dwordx4 v[{D+8*i+4}:{D+8*i+7}], v5, s[28:31], s56 offen offset:{64*i+16}")
    for i in range(4):
        a(f"buffer_load_dwordx4 v[{SC+4*i}:{SC+4*i+3}], v6, s[36:39], s58 offen offset:{32*i}")
        a(f"buffer_load_dwordx4 v[{ZR+4*i}:{ZR+4*i+3}], v6, s[40:43], s58 offen offset:{32*i}")
    a("s_waitcnt vmcnt(0)")
    T = 80
    for i in range(4):
        for p in range(4):
            d0, d1 = D + 8 * i + 2 * p, D + 8 * i + 2 * p + 1
            s_, z_ = SC + 4 * i + p, ZR + 4 * i + p
            t = T + 8 * p
            a(f"v_cvt_f32_i32 v{d0}, v{d0}")
            a(f"v_cvt_f32_i32 v{d1}, v{d1}")
            a(f"v_lshlrev_b32 v{t}, 16, v{z_}")
            a(f"v_and_b32 v{t+1}, s52, v{z_}")
            a(f"v_cvt_pk_bf16_f32 v{t+2}, v{d0}, v{d1}")
            a(f"v_lshlrev_b32 v{d0}, 16, v{t+2}")
            a(f"v_and_b32 v{d1}, s52, v{t+2}")
            a(f"v_sub_f32 v{d0}, v{d0}, v{t}")
            a(f"v_sub_f32 v{d1}, v{d1}, v{t+1}")
            a(f"v_lshlrev_b32 v{t}, 16, v{s_}")
            a(f"v_and_b32 v{t+1}, s52, v{s_}")
            a(f"v_cvt_pk_bf16_f32 v{t+2}, v{d0}, v{d1}")
            a(f"v_lshlrev_b32 v{d0}, 16, v{t+2}")
            a(f"v_and_b32 v{d1}, s52, v{t+2}")
            a(f"v_mul_f32 v{d0}, v{d0}, v{t}")
            a(f"v_mul_f32 v{d1}, v{d1}, v{t+1}")
            a(f"v_cvt_pk_bf16_f32 v{t+2}, v{d0}, v{d1}")
            a(f"v_lshlrev_b32 v{d0}, 16, v{t+2}")
            a(f"v_and_b32 v{d1}, s52, v{t+2}")
            a(f"v_mul_f32 v{d0}, s53, v{d0}")
            a(f"v_mul_f32 v{d1}, s53, v{d1}")
            a(f"v_cvt_pk_bf16_f32 v{112+4*i+p}, v{d0}, v{d1}")
        a(f"buffer_store_dwordx4 v[{112+4*i}:{112+4*i+3}], v7, s[24:27], s59 offen offset:{1024*i}")
    a("s_branch L_pp_done")
    a.label("L_pp_v")
    a("s_lshl_b32 s56, s23, 6")
    a("s_lshl_b32 s57, s18, 4")
    a("s_add_u32 s56, s56, s57")
    a("s_lshl_b32 s58, s56, 1")
    a("s_lshl_b32 s56, s56, 9")
    a("s_add_u32 s60, s56, 4096")
    a("v_lshlrev_b32 v5, 11, v4")
    a("v_lshl_add_u32 v5, v3, 4, v5")
    a("v_lshlrev_b32 v6, 3, v4")
    a("s_lshl_b32 s59, s23, 15")
    a("s_add_u32 s59, s59, 16384")
    a("s_lshl_b32 s57, s18, 12")
    a("s_add_u32 s59, s59, s57")
    a("v_lshrrev_b32 v8, 3, v3")
    a("v_lshlrev_b32 v7, 10, v8")
    a("v_bfe_u32 v8, v3, 2, 1")
    a("v_lshl_add_u32 v7, v8, 6, v7")
    a("v_and_b32 v8, 3, v3")
    a("v_lshl_add_u32 v7, v8, 7, v7")
    a("v_lshl_add_u32 v7, v4, 9, v7")
    D = 16
    for j in range(8):
        so = "s56" if j < 4 else "s60"
        a(f"buffer_load_dwordx4 v[{D+4*j}:{D+4*j+3}], v5, s[32:35], {so} offen offset:{512*(j&3)}")
    a("buffer_load_dwordx2 v[48:49], v6, s[44:47], s58 offen")
    a("buffer_load_dwordx2 v[50:51], v6, s[44:47], s58 offen offset:16")
    a("buffer_load_dwordx2 v[52:53], v6, s[48:51], s58 offen")
    a("buffer_load_dwordx2 v[54:55], v6, s[48:51], s58 offen offset:16")
    a("s_waitcnt vmcnt(0)")
    for p in range(4):
        a(f"v_lshlrev_b32 v{56+2*p}, 16, v{48+p}")
        a(f"v_and_b32 v{57+2*p}, s52, v{48+p}")
        a(f"v_lshlrev_b32 v{64+2*p}, 16, v{52+p}")
        a(f"v_and_b32 v{65+2*p}, s52, v{52+p}")
    for c in range(4):
        for p in range(4):
            j0, j1 = 2 * p, 2 * p + 1
            d0, d1 = D + 4 * j0 + c, D + 4 * j1 + c
            t = 80 + p
            a(f"v_cvt_f32_i32 v{d0}, v{d0}")
            a(f"v_cvt_f32_i32 v{d1}, v{d1}")
            a(f"v_cvt_pk_bf16_f32 v{t}, v{d0}, v{d1}")
            a(f"v_lshlrev_b32 v{d0}, 16, v{t}")
            a(f"v_and_b32 v{d1}, s52, v{t}")
            a(f"v_sub_f32 v{d0}, v{d0}, v{64+j0}")
            a(f"v_sub_f32 v{d1}, v{d1}, v{64+j1}")
            a(f"v_cvt_pk_bf16_f32 v{t}, v{d0}, v{d1}")
            a(f"v_lshlrev_b32 v{d0}, 16, v{t}")
            a(f"v_and_b32 v{d1}, s52, v{t}")
            a(f"v_mul_f32 v{d0}, v{d0}, v{56+j0}")
            a(f"v_mul_f32 v{d1}, v{d1}, v{56+j1}")
            a(f"v_cvt_pk_bf16_f32 v{96+4*c+p}, v{d0}, v{d1}")
        a(f"buffer_store_dwordx4 v[{96+4*c}:{96+4*c+3}], v7, s[24:27], s59 offen offset:{16*c}")
    a.label("L_pp_done")
    a("s_endpgm")


def O_(qb, db):
    return (qb * 4 + db) * 16


def Q_(qb, ds):
    return 128 + (qb * 8 + ds) * 4


def F_(i):
    return 192 + 4 * i


def S_(b):
    return 16 * b


NEGM = 64
PB = 96


def P_(par, b):
    return PB + par * 32 + b * 8


LACC = 160
V_L16 = 164
V_A0 = 165
V_A1 = 166
V_A2 = 167
V_DMA0 = 168
V_DMA1 = 169
V_T = 170
V_QOFF = 180
V_OOFF = 181
V_M = 182

S_WS, S_Q, S_OUT = 4, 8, 12
S_CNT = 16
S_DOFF = 17
S_SLA = 18
S_SLB = 19
S_TMP = 20
S_HB = 22
S_W8K = 23
S_FLAG = 24

NSLOT = 5
SLOTB = 32768


def blk_q(b):
    return b & 1


class Sched:
    def __init__(self, a, lead=4):
        self.a = a
        self.pending = []
        self.time = 0
        self.lead = lead

    def read(self, frag, addr_v, off):
        self.a(f"ds_read_b128 a[{F_(frag)}:{F_(frag)+3}], v{addr_v} offset:{off}")
        self.pending.append((frag, self.time))

    def need(self, frag):
        idx = None
        for i, (f, t) in enumerate(self.pending):
            if f == frag:
                idx = i
        if idx is None:
            return
        while idx + 1 < len(self.pending) and self.time - self.pending[idx + 1][1] >= self.lead:
            idx += 1
        n = len(self.pending) - 1 - idx
        self.a(f"s_waitcnt lgkmcnt({n})")
        self.pending = self.pending[idx + 1:]


def sm_elem_regs(k, par_cur):
    if k < 16:
        b, par = 3, par_cur
    else:
        b, par = (k - 16) // 16, par_cur ^ 1
    r = k & 15
    return S_(b) + r, blk_q(b), P_(par, b) + (r >> 1)


def sm_ops(k, par_cur, do_exp=True, do_prev=True):
    ops = []
    if do_exp:
        s, _, _ = sm_elem_regs(k, par_cur)
        ops.append(f"v_exp_f32 v{s}, v{s}")
    if do_prev:
        kp, pp = k - 1, par_cur
        if kp < 0:
            kp, pp = 63, par_cur ^ 1
        s, qb, p = sm_elem_regs(kp, pp)
        ops.append(f"v_add_f32 v{LACC+qb*2+(kp&1)}, v{LACC+qb*2+(kp&1)}, v{s}")
        if kp & 1:
            ops.append(f"v_cvt_pk_bf16_f32 v{p}, v{s-1}, v{s}")
    return ops


def dma_piece(a, i):
    if i == 0:
        a(f"s_mov_b32 m0, s{S_SLB}")
    if i == 4:
        a(f"s_add_u32 m0, s{S_SLB}, 0x1000")
    if i in (0, 4):
        a("s_nop 0")
    v = V_DMA0 if i < 4 else V_DMA1
    a(f"buffer_load_dwordx4 v{v}, s[{S_WS}:{S_WS+3}], s{S_DOFF} offen offset:{1024*(i&3)} lds")


def gen_body(a, sc, par, last=False, first=False):
    dma_slots = {50: 0, 53: 1, 56: 2, 59: 3, 62: 4, 3: 5, 7: 6, 11: 7}
    if first:
        dma_slots = {50: 0, 53: 1, 56: 2, 59: 3, 62: 4}
    for k in range(64):
        sc.time += 1
        do_mfma = True
        if k < 32:
            if last:
                do_mfma = False
            else:
                b, ds = k >> 3, k & 7
                qb = blk_q(b)
                sc.need(ds)
                c = f"v[{NEGM+16*qb}:{NEGM+16*qb+15}]" if ds == 0 else f"v[{S_(b)}:{S_(b)+15}]"
                a(f"v_mfma_f32_32x32x16_bf16 v[{S_(b)}:{S_(b)+15}], a[{F_(ds)}:{F_(ds)+3}], "
                  f"a[{Q_(qb,ds)}:{Q_(qb,ds)+3}], {c}")
        else:
            i, qb = (k - 32) >> 1, (k - 32) & 1
            s, db = i >> 2, i & 3
            b = (s >> 1) * 2 + qb
            p = P_(par, b) + (s & 1) * 4
            sc.need(i & 7)
            o = O_(qb, db)
            a(f"v_mfma_f32_32x32x16_bf16 a[{o}:{o+15}], a[{F_(i&7)}:{F_(i&7)+3}], v[{p}:{p+3}], a[{o}:{o+15}]")
        if last:
            ops = sm_ops(k, par, do_exp=(k < 16), do_prev=(k <= 16))
        else:
            ops = sm_ops(k, par)
        for op in ops:
            a(op)
        if last and k < 32 and not ops:
            pass
        if 8 <= k < 16 and not last:
            sc.read(k - 8, V_A1, (8 + (k - 8)) * 1024)
        if 24 <= k < 32:
            sc.read(k - 24, V_A0, 16384 + (k - 24) * 1024)
        if k >= 33 and (k & 1):
            i = (k - 33) >> 1
            if i < 8:
                sc.read(i, V_A0, 16384 + (8 + i) * 1024)
            elif not last:
                sc.read(i - 8, V_A2, (i - 8) * 1024)
        if last:
            continue
        if k == 48:
            a("s_waitcnt vmcnt(8)")
            a("s_barrier")
        if k in dma_slots:
            dma_piece(a, dma_slots[k])
        if k == 12 and not first:
            a(f"s_add_u32 s{S_DOFF}, s{S_DOFF}, 0x8000")
            a(f"s_add_u32 s{S_SLB}, s{S_SLB}, 0x8000")
            a(f"s_sub_u32 s{S_TMP}, s{S_SLB}, {NSLOT*SLOTB:#x}")
            a(f"s_cmp_ge_u32 s{S_SLB}, {NSLOT*SLOTB:#x}")
            a(f"s_cselect_b32 s{S_SLB}, s{S_TMP}, s{S_SLB}")
    if not last:
        a(f"s_add_u32 s{S_SLA}, s{S_SLA}, 0x8000")
        a(f"s_cmp_eq_u32 s{S_SLA}, {NSLOT*SLOTB:#x}")
        a(f"s_cselect_b32 s{S_SLA}, 0, s{S_SLA}")
        a(f"v_mov_b32 v{V_A0}, v{V_A1}")
        a(f"v_mov_b32 v{V_A1}, v{V_A2}")
        a(f"v_add_u32 v{V_A2}, s{S_SLA}, v{V_L16}")


def gen_main(a):
    K = NAME + "_kernel"
    a.raw(".p2align 8")
    a.raw(f".globl {K}")
    a.raw(f".type {K},@function")
    a.label(K)
    a("s_cmp_ge_u32 s2, 256")
    a("s_cbranch_scc1 L_done")
    a("s_load_dwordx2 s[26:27], s[0:1], 0")
    a("s_load_dwordx2 s[28:29], s[0:1], 56")
    a("s_load_dwordx2 s[30:31], s[0:1], 72")
    a(f"v_lshrrev_b32 v{V_T}, 6, v0")
    a(f"v_and_b32 v{V_T+1}, 63, v0")
    a(f"v_readfirstlane_b32 s32, v{V_T}")
    a(f"v_lshlrev_b32 v{V_L16}, 4, v{V_T+1}")
    a("s_and_b32 s33, s2, 7")
    a("s_lshr_b32 s34, s2, 3")
    a("s_and_b32 s35, s34, 3")
    a("s_lshl_b32 s36, s33, 2")
    a("s_add_u32 s35, s35, s36")
    a("s_lshr_b32 s36, s34, 2")
    a("s_lshl_b32 s35, s35, 11")
    a("s_lshl_b32 s36, s36, 8")
    a("s_add_u32 s35, s35, s36")
    a("s_lshl_b32 s36, s32, 6")
    a("s_add_u32 s35, s35, s36")
    a("s_lshl_b32 s35, s35, 8")
    a(f"s_lshl_b32 s{S_HB}, s33, 20")
    a(f"s_lshl_b32 s{S_W8K}, s32, 13")
    a(f"s_mov_b32 s{S_FLAG}, 0")
    a(f"v_and_b32 v{V_T+2}, 31, v{V_T+1}")
    a(f"v_lshrrev_b32 v{V_T+3}, 5, v{V_T+1}")
    a(f"v_lshlrev_b32 v{V_QOFF}, 8, v{V_T+2}")
    a(f"v_lshl_add_u32 v{V_OOFF}, v{V_T+3}, 5, v{V_QOFF}")
    a(f"v_lshl_add_u32 v{V_QOFF}, v{V_T+3}, 4, v{V_QOFF}")
    a(f"v_add_u32 v{V_DMA0}, s{S_W8K}, v{V_L16}")
    a(f"v_add_u32 v{V_DMA1}, 0x1000, v{V_DMA0}")
    a("s_waitcnt lgkmcnt(0)")
    srd(a, S_WS, 30, 0x10000000)
    srd(a, S_Q, 26, 0x1000000)
    srd(a, S_OUT, 28, 0x1000000)
    a(f"s_mov_b32 s{S_DOFF}, s{S_HB}")
    a(f"s_mov_b32 s{S_SLB}, s{S_W8K}")

    def dma_tile():
        for i in range(8):
            dma_piece(a, i)
        a(f"s_add_u32 s{S_DOFF}, s{S_DOFF}, 0x8000")
        a(f"s_add_u32 s{S_SLB}, s{S_SLB}, 0x8000")
    dma_tile()
    a("s_add_u32 s36, s35, 0x2000")
    for qb in range(2):
        so = "s35" if qb == 0 else "s36"
        for ds in range(8):
            a(f"buffer_load_dwordx4 a[{Q_(qb,ds)}:{Q_(qb,ds)+3}], v{V_QOFF}, s[{S_Q}:{S_Q+3}], {so} offen offset:{32*ds}")
    dma_tile()
    dma_tile()
    dma_tile()
    for i in range(128):
        a(f"v_accvgpr_write_b32 a{i}, 0")
    for i in range(4):
        a(f"v_mov_b32 v{LACC+i}, 0")
    a(f"v_mov_b32 v{V_A0}, v{V_L16}")
    a(f"v_add_u32 v{V_A1}, 0x8000, v{V_L16}")
    a(f"v_add_u32 v{V_A2}, 0x10000, v{V_L16}")
    a(f"s_mov_b32 s{S_SLA}, 0x10000")
    a("s_waitcnt vmcnt(24)")
    a("s_barrier")
    sc = Sched(a)
    for ds in range(8):
        sc.read(ds, V_A0, ds * 1024)
    for k in range(32):
        sc.time += 1
        b, ds = k >> 3, k & 7
        qb = blk_q(b)
        sc.need(ds)
        c = "0" if ds == 0 else f"v[{S_(b)}:{S_(b)+15}]"
        a(f"v_mfma_f32_32x32x16_bf16 v[{S_(b)}:{S_(b)+15}], a[{F_(ds)}:{F_(ds)+3}], "
          f"a[{Q_(qb,ds)}:{Q_(qb,ds)+3}], {c}")
        if 8 <= k < 16:
            sc.read(k - 8, V_A0, (8 + (k - 8)) * 1024)
        if k == 23:
            a("s_waitcnt vmcnt(16)")
            a("s_barrier")
        if k >= 24:
            sc.read(k - 24, V_A1, (k - 24) * 1024)
    a("s_nop 15")
    a("s_nop 3")
    for qb in range(2):
        regs = [S_(qb) + r for r in range(16)] + [S_(2 + qb) + r for r in range(16)]
        m = V_T + 2 * qb
        a(f"v_max3_f32 v{m}, v{regs[0]}, v{regs[1]}, v{regs[2]}")
        for i in range(3, 31, 2):
            a(f"v_max3_f32 v{m}, v{m}, v{regs[i]}, v{regs[i+1]}")
        a(f"v_max_f32 v{m}, v{m}, v{regs[31]}")
        a(f"v_mov_b32 v{m+1}, v{m}")
    a("s_nop 1")
    for qb in range(2):
        m = V_T + 2 * qb
        a(f"v_permlane32_swap_b32 v{m}, v{m+1}")
    a("s_nop 1")
    for qb in range(2):
        m = V_T + 2 * qb
        a(f"v_max_f32 v{m}, v{m}, v{m+1}")
        for r in range(16):
            a(f"v_sub_f32 v{NEGM+16*qb+r}, 0, v{m}")
    for b in range(4):
        qb = blk_q(b)
        for r in range(16):
            a(f"v_add_f32 v{S_(b)+r}, v{S_(b)+r}, v{NEGM+16*qb}")
    for k in range(16, 64):
        for op in sm_ops(k, 1, do_exp=True, do_prev=(k > 16)):
            a(op)
    sc.time += 8
    gen_body(a, sc, 0, first=True)
    gen_body(a, sc, 1)
    a(f"s_mov_b32 s{S_CNT}, 14")
    a.raw(".p2align 6")
    a.label("L_loop")
    gen_body(a, sc, 0)
    gen_body(a, sc, 1)
    a(f"s_sub_u32 s{S_CNT}, s{S_CNT}, 1")
    a(f"s_cmp_lg_u32 s{S_CNT}, 0")
    a("s_cbranch_scc1 L_loop")
    gen_body(a, sc, 0)
    gen_body(a, sc, 1, last=True)
    a.label("L_epi")
    a("s_waitcnt vmcnt(0)")
    a("s_nop 15")
    a("s_nop 3")
    for qb in range(2):
        l = LACC + 2 * qb
        a(f"v_add_f32 v{l}, v{l}, v{l+1}")
        a(f"v_mov_b32 v{l+1}, v{l}")
    a("s_nop 1")
    for qb in range(2):
        l = LACC + 2 * qb
        a(f"v_permlane32_swap_b32 v{l}, v{l+1}")
    a("s_nop 1")
    a(f"s_mov_b32 s{S_TMP}, {f32bits(2.0**100):#x}")
    for qb in range(2):
        l = LACC + 2 * qb
        a(f"v_add_f32 v{l}, v{l}, v{l+1}")
    a(f"v_cmp_nle_f32 s[40:41], v{LACC}, s{S_TMP}")
    a(f"v_cmp_nle_f32 s[42:43], v{LACC+2}, s{S_TMP}")
    for qb in range(2):
        l = LACC + 2 * qb
        a(f"v_rcp_f32 v{l}, v{l}")
    a(f"v_mov_b32 v{V_T}, 0")
    a(f"v_mov_b32 v{V_T+1}, 0")
    for qb in range(2):
        l = LACC + 2 * qb
        for db in range(4):
            o = O_(qb, db)
            for r in range(0, 16, 2):
                t = 64 + (r & 7)
                a(f"v_accvgpr_read_b32 v{t}, a{o+r}")
                a(f"v_accvgpr_read_b32 v{t+1}, a{o+r+1}")
                a(f"v_mul_f32 v{t}, v{t}, v{l}")
                a(f"v_mul_f32 v{t+1}, v{t+1}, v{l}")
                a(f"v_fma_f32 v{V_T}, v{t}, 0, v{V_T}")
                a(f"v_fma_f32 v{V_T+1}, v{t+1}, 0, v{V_T+1}")
                a(f"v_cvt_pk_bf16_f32 v{qb*32+db*8+(r>>1)}, v{t}, v{t+1}")
    a(f"v_add_f32 v{V_T}, v{V_T}, v{V_T+1}")
    a(f"v_cmp_u_f32 vcc, v{V_T}, v{V_T}")
    a("s_or_b64 s[40:41], s[40:41], s[42:43]")
    a("s_or_b64 vcc, vcc, s[40:41]")
    a(f"s_cmp_lg_u32 s{S_FLAG}, 0")
    a("s_cbranch_scc1 L_store")
    a("s_cbranch_vccnz L_fallback")
    a.label("L_store")
    for qb in range(2):
        so = "s35" if qb == 0 else "s36"
        for db in range(4):
            for hh in range(2):
                r = qb * 32 + db * 8 + hh * 4
                a(f"buffer_store_dwordx4 v[{r}:{r+3}], v{V_OOFF}, s[{S_OUT}:{S_OUT+3}], {so} offen offset:{db*64+hh*16}")
    a.label("L_done")
    a("s_endpgm")

    a.label("L_fallback")
    a(f"s_mov_b32 s{S_FLAG}, 1")
    a("s_waitcnt vmcnt(0)")
    for i in range(128):
        a(f"v_accvgpr_write_b32 a{i}, 0")
    for i in range(4):
        a(f"v_mov_b32 v{LACC+i}, 0")
    a(f"v_mov_b32 v{V_M}, {f32bits(-3.0e38):#x}")
    a(f"v_mov_b32 v{V_M+1}, {f32bits(-3.0e38):#x}")
    a(f"s_mov_b32 s{S_DOFF}, s{S_HB}")
    a(f"s_mov_b32 s{S_CNT}, 32")
    a.label("L_fb_loop")

    def fb_load8():
        for q4 in range(2):
            for i in range(4):
                f = q4 * 4 + i
                a(f"buffer_load_dwordx4 a[{F_(f)}:{F_(f)+3}], v{V_L16}, s[{S_WS}:{S_WS+3}], s{S_DOFF} offen offset:{1024*i}")
            a(f"s_add_u32 s{S_DOFF}, s{S_DOFF}, 0x1000")
        a("s_waitcnt vmcnt(0)")
    for kb in range(2):
        fb_load8()
        for qb in range(2):
            b = kb * 2 + qb
            for ds in range(8):
                c = "0" if ds == 0 else f"v[{S_(b)}:{S_(b)+15}]"
                a(f"v_mfma_f32_32x32x16_bf16 v[{S_(b)}:{S_(b)+15}], a[{F_(ds)}:{F_(ds)+3}], "
                  f"a[{Q_(qb,ds)}:{Q_(qb,ds)+3}], {c}")
        a("s_nop 15")
        a("s_nop 3")
    for qb in range(2):
        regs = [S_(qb) + r for r in range(16)] + [S_(2 + qb) + r for r in range(16)]
        m = V_T + 2 * qb
        a(f"v_max3_f32 v{m}, v{regs[0]}, v{regs[1]}, v{V_M+qb}")
        for i in range(2, 32, 2):
            a(f"v_max3_f32 v{m}, v{m}, v{regs[i]}, v{regs[i+1]}")
        a(f"v_mov_b32 v{m+1}, v{m}")
    a("s_nop 1")
    for qb in range(2):
        m = V_T + 2 * qb
        a(f"v_permlane32_swap_b32 v{m}, v{m+1}")
    a("s_nop 1")
    for qb in range(2):
        m = V_T + 2 * qb
        al = V_T + 4 + qb
        a(f"v_max_f32 v{m}, v{m}, v{m+1}")
        a(f"v_sub_f32 v{al}, v{V_M+qb}, v{m}")
        a(f"v_exp_f32 v{al}, v{al}")
        a(f"v_mov_b32 v{V_M+qb}, v{m}")
        a(f"v_mul_f32 v{LACC+2*qb}, v{LACC+2*qb}, v{al}")
        a(f"v_mul_f32 v{LACC+2*qb+1}, v{LACC+2*qb+1}, v{al}")
        for db in range(4):
            o = O_(qb, db)
            for r in range(16):
                a(f"v_accvgpr_read_b32 v{V_T+6}, a{o+r}")
                a(f"v_mul_f32 v{V_T+6}, v{V_T+6}, v{al}")
                a(f"v_accvgpr_write_b32 a{o+r}, v{V_T+6}")
    for b in range(4):
        qb = blk_q(b)
        m = V_T + 2 * qb
        for r in range(16):
            s = S_(b) + r
            a(f"v_sub_f32 v{s}, v{s}, v{m}")
        for r in range(16):
            s = S_(b) + r
            a(f"v_exp_f32 v{s}, v{s}")
        a("s_nop 0")
        for r in range(16):
            s = S_(b) + r
            a(f"v_add_f32 v{LACC+qb*2+(r&1)}, v{LACC+qb*2+(r&1)}, v{s}")
        for r in range(0, 16, 2):
            s = S_(b) + r
            a(f"v_cvt_pk_bf16_f32 v{P_(0,b)+(r>>1)}, v{s}, v{s+1}")
    for half in range(2):
        fb_load8()
        for i8 in range(8):
            i = half * 8 + i8
            s, db = i >> 2, i & 3
            for qb in range(2):
                b = (s >> 1) * 2 + qb
                p = P_(0, b) + (s & 1) * 4
                o = O_(qb, db)
                a(f"v_mfma_f32_32x32x16_bf16 a[{o}:{o+15}], a[{F_(i8)}:{F_(i8)+3}], v[{p}:{p+3}], a[{o}:{o+15}]")
        a("s_nop 15")
        a("s_nop 3")
    a(f"s_sub_u32 s{S_CNT}, s{S_CNT}, 1")
    a(f"s_cmp_lg_u32 s{S_CNT}, 0")
    a("s_cbranch_scc1 L_fb_loop")
    a("s_branch L_epi")


def descriptor(a, name, vgpr, sgpr, accum):
    a.raw(f".amdhsa_kernel {name}")
    a.raw(f"  .amdhsa_next_free_vgpr {vgpr}")
    a.raw(f"  .amdhsa_next_free_sgpr {sgpr}")
    a.raw(f"  .amdhsa_accum_offset {accum}")
    a.raw("  .amdhsa_group_segment_fixed_size 0")
    a.raw("  .amdhsa_kernarg_size 80")
    a.raw("  .amdhsa_user_sgpr_count 2")
    a.raw("  .amdhsa_user_sgpr_kernarg_segment_ptr 1")
    a.raw("  .amdhsa_system_sgpr_workgroup_id_x 1")
    a.raw(".end_amdhsa_kernel")


def main():
    out = sys.argv[1] if len(sys.argv) > 1 else OUT
    a = Asm()
    a.raw(HEADER.rstrip("\n"))
    a.raw("; @launch kernel=kvq_dequant_kernel grid=(512,1,1) block=(256,1,1) lds=0")
    a.raw(f"; @launch kernel={NAME}_kernel grid=(256,1,1) block=(256,1,1) lds={NSLOT*SLOTB}")
    a.raw('.amdgcn_target "amdgcn-amd-amdhsa--gfx950"')
    a.raw(".text")
    gen_prepass(a)
    gen_main(a)
    a.raw('.section .rodata,"a"')
    a.raw(".p2align 6")
    descriptor(a, "kvq_dequant_kernel", 128, 64, 128)
    a.raw(".p2align 6")
    descriptor(a, NAME + "_kernel", 512, 64, 256)
    open(out, "w").write(a.text())


if __name__ == "__main__":
    main()
```

```python
import math
import os
import struct
import sys

OPT = set(os.environ.get("GENOPT", "").split(","))
NAME = "standalone__kv_cache_quant_int4_int2_kv_with_per_channel_or_per_token_scales__prompt"
OUT = f"cdna_kernels/{NAME}.s"

HEADER = """; Kernarg layout for this problem (80 bytes, ptrs only, base s[0:1]):
;   offset   8: d_in[1] qk  shape=(1, 8, 2048, 128) dtype=int32 strides=(8388608, 1048576, 512, 4) contiguous=True
;
;   P = exp2(S^T), O^T += V^T P^T, row sums via a ones-operand MFMA.  If a later tile makes that
;   reference max unsafe (row sum too large / non finite output) the wave re-does its rows with a
"""


def f32bits(x):
    return struct.unpack("<I", struct.pack("<f", x))[0]


class Asm:
    def __init__(self):
        self.lines = []

    def __call__(self, s):
        self.lines.append("    " + s)

    def label(self, s):
        self.lines.append(s + ":")

    def raw(self, s):
        self.lines.append(s)

    def text(self):
        return "\n".join(self.lines) + "\n"


def srd(a, d, base, nbytes):
    a(f"s_mov_b32 s{d}, s{base}")
    a(f"s_and_b32 s{d+1}, s{base+1}, 0xffff")
    a(f"s_mov_b32 s{d+2}, {nbytes:#x}")
    a(f"s_mov_b32 s{d+3}, 0x00020000")


def gen_prepass(a):
    CS = f32bits(math.log2(math.e) / math.sqrt(128.0))
    a.raw(".p2align 8")
    a.raw(".globl kvq_dequant_kernel")
    a.raw(".type kvq_dequant_kernel,@function")
    a.label("kvq_dequant_kernel")
    a("s_cmp_ge_u32 s2, 512")
    a("s_cbranch_scc1 L_pp_done")
    a("s_load_dwordx4 s[4:7], s[0:1], 8")
    a("s_load_dwordx4 s[8:11], s[0:1], 24")
    a("s_load_dwordx4 s[12:15], s[0:1], 40")
    a("s_load_dwordx2 s[16:17], s[0:1], 72")
    a("v_lshrrev_b32 v1, 6, v0")
    a("v_and_b32 v2, 63, v0")
    a("v_and_b32 v3, 31, v0")
    a("v_readfirstlane_b32 s18, v1")
    a("v_lshrrev_b32 v4, 5, v2")
    a("v_and_b32 v9, 15, v0")
    a("v_lshrrev_b32 v10, 4, v2")
    a("s_and_b32 s19, s2, 7")
    a("s_lshr_b32 s20, s2, 3")
    a("s_lshr_b32 s21, s20, 1")
    a("s_and_b32 s22, s20, 1")
    a("s_lshl_b32 s23, s19, 5")
    a("s_add_u32 s23, s23, s21")
    a("s_waitcnt lgkmcnt(0)")
    srd(a, 24, 16, 0x10000000)
    srd(a, 28, 4, 0x800000)
    srd(a, 32, 6, 0x800000)
    srd(a, 36, 8, 0x10000)
    srd(a, 40, 10, 0x10000)
    srd(a, 44, 12, 0x8000)
    srd(a, 48, 14, 0x8000)
    a("s_mov_b32 s52, 0xffff0000")
    a(f"s_mov_b32 s53, {CS:#x}")
    a("s_cmp_eq_u32 s22, 1")
    a("s_cbranch_scc1 L_pp_v")
    a("s_lshl_b32 s56, s23, 6")
    a("s_lshl_b32 s57, s18, 4")
    a("s_add_u32 s56, s56, s57")
    a("s_lshl_b32 s56, s56, 9")
    a("v_lshlrev_b32 v5, 9, v9")
    a("v_lshl_add_u32 v5, v10, 5, v5")
    a("s_lshl_b32 s58, s23, 8")
    a("v_lshlrev_b32 v6, 4, v10")
    a("s_lshl_b32 s59, s19, 21")
    a("s_lshl_b32 s57, s21, 15")
    a("s_add_u32 s59, s59, s57")
    a("s_lshl_b32 s57, s18, 12")
    a("s_add_u32 s59, s59, s57")
    a("s_sub_u32 s59, s59, 8192")
    a("s_add_u32 s57, s59, 16384")
    a("s_cmp_lt_u32 s18, 2")
    a("s_cselect_b32 s61, 1, 0")
    a("s_cmp_eq_u32 s21, 0")
    a("s_cselect_b32 s62, 1, 0")
    a("s_and_b32 s61, s61, s62")
    a("s_cmp_eq_u32 s61, 1")
    a("s_cselect_b32 s59, s57, s59")
    a("v_lshlrev_b32 v7, 4, v2")
    D = 16
    SC = 48
    ZR = 64
    for i in range(4):
        a(f"buffer_load_dwordx4 v[{D+8*i}:{D+8*i+3}], v5, s[28:31], s56 offen offset:{128*i}")
        a(f"buffer_load_dwordx4 v[{D+8*i+4}:{D+8*i+7}], v5, s[28:31], s56 offen offset:{128*i+16}")
    for i in range(4):
        a(f"buffer_load_dwordx4 v[{SC+4*i}:{SC+4*i+3}], v6, s[36:39], s58 offen offset:{64*i}")
        a(f"buffer_load_dwordx4 v[{ZR+4*i}:{ZR+4*i+3}], v6, s[40:43], s58 offen offset:{64*i}")
    a("s_waitcnt vmcnt(0)")
    T = 80
    for i in range(4):
        for p in range(4):
            d0, d1 = D + 8 * i + 2 * p, D + 8 * i + 2 * p + 1
            s_, z_ = SC + 4 * i + p, ZR + 4 * i + p
            t = T + 8 * p
            a(f"v_cvt_f32_i32 v{d0}, v{d0}")
            a(f"v_cvt_f32_i32 v{d1}, v{d1}")
            a(f"v_lshlrev_b32 v{t}, 16, v{z_}")
            a(f"v_and_b32 v{t+1}, s52, v{z_}")
            a(f"v_cvt_pk_bf16_f32 v{t+2}, v{d0}, v{d1}")
            a(f"v_lshlrev_b32 v{d0}, 16, v{t+2}")
            a(f"v_and_b32 v{d1}, s52, v{t+2}")
            a(f"v_sub_f32 v{d0}, v{d0}, v{t}")
            a(f"v_sub_f32 v{d1}, v{d1}, v{t+1}")
            a(f"v_lshlrev_b32 v{t}, 16, v{s_}")
            a(f"v_and_b32 v{t+1}, s52, v{s_}")
            a(f"v_cvt_pk_bf16_f32 v{t+2}, v{d0}, v{d1}")
            a(f"v_lshlrev_b32 v{d0}, 16, v{t+2}")
            a(f"v_and_b32 v{d1}, s52, v{t+2}")
            a(f"v_mul_f32 v{d0}, v{d0}, v{t}")
            a(f"v_mul_f32 v{d1}, v{d1}, v{t+1}")
            a(f"v_cvt_pk_bf16_f32 v{t+2}, v{d0}, v{d1}")
            a(f"v_lshlrev_b32 v{d0}, 16, v{t+2}")
            a(f"v_and_b32 v{d1}, s52, v{t+2}")
            a(f"v_mul_f32 v{d0}, s53, v{d0}")
            a(f"v_mul_f32 v{d1}, s53, v{d1}")
            a(f"v_cvt_pk_bf16_f32 v{112+4*i+p}, v{d0}, v{d1}")
        a(f"buffer_store_dwordx4 v[{112+4*i}:{112+4*i+3}], v7, s[24:27], s59 offen offset:{1024*i}")
    a("s_branch L_pp_done")
    a.label("L_pp_v")
    a("s_lshl_b32 s56, s23, 6")
    a("s_lshr_b32 s54, s18, 1")
    a("s_and_b32 s55, s18, 1")
    a("s_lshl_b32 s57, s54, 5")
    a("s_add_u32 s56, s56, s57")
    a("s_lshl_b32 s57, s55, 3")
    a("s_add_u32 s56, s56, s57")
    a("s_lshl_b32 s58, s56, 1")
    a("s_lshl_b32 s56, s56, 9")
    a("s_add_u32 s60, s56, 8192")
    a("v_lshlrev_b32 v5, 11, v4")
    a("v_lshl_add_u32 v5, v3, 4, v5")
    a("v_lshlrev_b32 v6, 3, v4")
    a("s_lshl_b32 s59, s19, 21")
    a("s_lshl_b32 s57, s21, 15")
    a("s_add_u32 s59, s59, s57")
    a("s_add_u32 s59, s59, 40960")
    a("s_lshl_b32 s57, s54, 10")
    a("s_add_u32 s59, s59, s57")
    a("s_lshl_b32 s57, s55, 9")
    a("s_add_u32 s59, s59, s57")
    a("v_lshrrev_b32 v8, 3, v3")
    a("v_lshlrev_b32 v7, 12, v8")
    a("v_and_b32 v8, 1, v3")
    a("v_lshl_add_u32 v7, v8, 11, v7")
    a("v_bfe_u32 v8, v3, 1, 2")
    a("v_lshl_add_u32 v7, v8, 6, v7")
    a("v_lshl_add_u32 v7, v4, 8, v7")
    D = 16
    for j in range(8):
        so = "s56" if j < 4 else "s60"
        a(f"buffer_load_dwordx4 v[{D+4*j}:{D+4*j+3}], v5, s[32:35], {so} offen offset:{512*(j&3)}")
    a("buffer_load_dwordx2 v[48:49], v6, s[44:47], s58 offen")
    a("buffer_load_dwordx2 v[50:51], v6, s[44:47], s58 offen offset:32")
    a("buffer_load_dwordx2 v[52:53], v6, s[48:51], s58 offen")
    a("buffer_load_dwordx2 v[54:55], v6, s[48:51], s58 offen offset:32")
    a("s_waitcnt vmcnt(0)")
    for p in range(4):
        a(f"v_lshlrev_b32 v{56+2*p}, 16, v{48+p}")
        a(f"v_and_b32 v{57+2*p}, s52, v{48+p}")
        a(f"v_lshlrev_b32 v{64+2*p}, 16, v{52+p}")
        a(f"v_and_b32 v{65+2*p}, s52, v{52+p}")
    for c in range(4):
        for p in range(4):
            j0, j1 = 2 * p, 2 * p + 1
            d0, d1 = D + 4 * j0 + c, D + 4 * j1 + c
            t = 80 + p
            a(f"v_cvt_f32_i32 v{d0}, v{d0}")
            a(f"v_cvt_f32_i32 v{d1}, v{d1}")
            a(f"v_cvt_pk_bf16_f32 v{t}, v{d0}, v{d1}")
            a(f"v_lshlrev_b32 v{d0}, 16, v{t}")
            a(f"v_and_b32 v{d1}, s52, v{t}")
            a(f"v_sub_f32 v{d0}, v{d0}, v{64+j0}")
            a(f"v_sub_f32 v{d1}, v{d1}, v{64+j1}")
            a(f"v_cvt_pk_bf16_f32 v{t}, v{d0}, v{d1}")
            a(f"v_lshlrev_b32 v{d0}, 16, v{t}")
            a(f"v_and_b32 v{d1}, s52, v{t}")
            a(f"v_mul_f32 v{d0}, v{d0}, v{56+j0}")
            a(f"v_mul_f32 v{d1}, v{d1}, v{56+j1}")
            a(f"v_cvt_pk_bf16_f32 v{96+4*c+p}, v{d0}, v{d1}")
        a(f"buffer_store_dwordx4 v[{96+4*c}:{96+4*c+3}], v7, s[24:27], s59 offen offset:{16*c}")
    a.label("L_pp_done")
    a("s_endpgm")


def O_(qb, db):
    return (qb * 8 + db) * 4


def Q_(qb, ds):
    return 128 + (qb * 4 + ds) * 4


def F_(i):
    return 192 + 4 * i


def L_(qb):
    return 224 + 4 * qb


A_ONES = 240


def S_(kvb, qb):
    return (kvb * 4 + qb) * 4


NEGM = 64
PB = 96


def P_(par, s, qb):
    return PB + par * 32 + (s * 4 + qb) * 4


V_L16 = 164
V_AB = 165
V_DMA0 = 168
V_DMA1 = 169
V_T = 170
V_QOFF = 180
V_M = 182
V_R = 186

S_WS, S_Q, S_OUT = 4, 8, 12
S_CNT = 16
S_DOFF = 17
S_SLB = 19
S_TMP = 20
S_HB = 22
S_W8K = 23
S_FLAG = 24
S_ROW = 35

NSLOT = 4
SLOTB = 32768
MF = "v_mfma_f32_16x16x32_bf16"
SEC_A, SEC_B, SEC_C = 0, 8192, 24576


class Sched:
    def __init__(self, a, lead=6):
        self.a = a
        self.pending = []
        self.time = 0
        self.lead = lead
        self.carry = [-1]

    def read(self, frag, addr_v, off):
        if "nord" not in OPT:
            self.a(f"ds_read_b128 a[{F_(frag)}:{F_(frag)+3}], v{addr_v} offset:{off}")
        self.pending.append((frag, self.time))

    def need(self, frags, extra=""):
        idx = None
        for i, (f, t) in enumerate(self.pending):
            if f in frags:
                idx = i
        if idx is None:
            return False
        while idx + 1 < len(self.pending) and self.time - self.pending[idx + 1][1] >= self.lead:
            idx += 1
        n = len(self.pending) - 1 - idx
        self.a(f"s_waitcnt lgkmcnt({n})")
        self.pending = self.pending[idx + 1:]
        return True


def elem(j, par_cur):
    if j < 16:
        e, par = 48 + j, par_cur
    else:
        e, par = j - 16, par_cur ^ 1
    B, r = e >> 2, e & 3
    kvb, qb = B >> 2, B & 3
    return S_(kvb, qb) + r, P_(par, kvb >> 1, qb) + (kvb & 1) * 2 + (r >> 1)


def exp_op(j, par):
    s, _ = elem(j, par)
    return f"v_exp_f32 v{s}, v{s}"


def cvt_op(j, par):
    if j < 0:
        j, par = j + 64, par ^ 1
    s, p = elem(j, par)
    return f"v_cvt_pk_bf16_f32 v{p}, v{s-1}, v{s}"


def dma_op(i):
    v = V_DMA0 if i < 4 else V_DMA1
    return f"buffer_load_dwordx4 v{v}, s[{S_WS}:{S_WS+3}], s{S_DOFF} offen offset:{1024*(i&3)} lds"


def dma_tile(a):
    for i in range(8):
        if i == 0:
            a(f"s_mov_b32 m0, s{S_SLB}")
            a("s_nop 0")
        if i == 4:
            a(f"s_add_u32 m0, s{S_SLB}, 0x1000")
            a("s_nop 0")
        a(dma_op(i))
    a(f"s_add_u32 s{S_DOFF}, s{S_DOFF}, 0x8000")
    a(f"s_add_u32 s{S_SLB}, s{S_SLB}, 0x8000")
    a(f"s_and_b32 s{S_SLB}, s{S_SLB}, 0x1ffff")


NS = 136
PV0 = 72
BAR = 11
DMA_SLOTS = [21, 37, 53, 69, 85, 101, 117, 131]
FREE_EVEN = {10, 46, 90, 134}
CVQ_MAX = 5


def mfma_info(k):
    if k < 64:
        kvb, qb, ds = k >> 4, (k >> 2) & 3, k & 3
        return ("qk", (kvb, qb, ds), 4 * (kvb & 1) + ds)
    if k < PV0:
        return ("sum", ((k - 64) >> 1, (k - 64) & 1), None)
    i = k - PV0
    db, qb, s = i >> 3, (i >> 1) & 3, i & 1
    return ("pv", (db, qb, s), (2 * db + s) & 7)


def gen_body(a, sc, par, last=False, dma=True):
    ubase = ((par ^ 1)) * SLOTB
    exq = list(range(16 if last else 64))
    cvq = list(sc.carry)
    rdq = []
    misc = []
    if not last:
        misc.append((13, [f"s_mov_b32 m0, s{S_SLB}"]))
        misc.append((70, [f"s_add_u32 m0, s{S_SLB}, 0x1000"]))
        misc.append((132, [f"s_add_u32 s{S_DOFF}, s{S_DOFF}, 0x8000"]))
        misc.append((132, [f"s_add_u32 s{S_SLB}, s{S_SLB}, 0x8000"]))
        misc.append((132, [f"s_and_b32 s{S_SLB}, s{S_SLB}, 0x1ffff"]))
    dmai = 0
    pend_cv = []
    for k in range(NS):
        sc.time += 1
        kind, prm, f = mfma_info(k)
        units = 2
        if f is not None and not (last and kind == "qk"):
            assert all(r[0] != f for r in rdq), (k, f, rdq)
        if kind == "qk":
            kvb, qb, ds = prm
            if not last:
                if sc.need([f]):
                    pass
                d = S_(kvb, qb)
                c = f"v[{NEGM+4*qb}:{NEGM+4*qb+3}]" if ds == 0 else f"v[{d}:{d+3}]"
                a(f"{MF} v[{d}:{d+3}], a[{F_(f)}:{F_(f)+3}], a[{Q_(qb,ds)}:{Q_(qb,ds)+3}], {c}")
            if qb == 3:
                if kvb < 2:
                    if not last:
                        rdq.append((f, V_AB, ubase + SEC_A + (kvb * 4 + ds) * 1024))
                else:
                    rdq.append((f, V_AB, ubase + SEC_B + f * 1024))
        elif kind == "sum":
            qb, s = prm
            p = P_(par, s, qb)
            a(f"{MF} a[{L_(qb)}:{L_(qb)+3}], a[{A_ONES}:{A_ONES+3}], v[{p}:{p+3}], a[{L_(qb)}:{L_(qb)+3}]")
        else:
            db, qb, s = prm
            fv = 2 * db + s
            sc.need([f])
            p = P_(par, s, qb)
            o = O_(qb, db)
            a(f"{MF} a[{o}:{o+3}], a[{F_(f)}:{F_(f)+3}], v[{p}:{p+3}], a[{o}:{o+3}]")
            if qb == 3:
                if fv < 8:
                    rdq.append((f, V_AB, ubase + SEC_B + (fv + 8) * 1024))
                elif not last:
                    rdq.append((f, V_AB, ubase + SEC_C + (fv - 8) * 1024))
        cvq += pend_cv
        pend_cv = []
        if k == BAR:
            if last:
                a("s_waitcnt vmcnt(0) lgkmcnt(0)")
            else:
                a("s_waitcnt vmcnt(16) lgkmcnt(0)")
            sc.pending = []
            if "nobar" not in OPT:
                a("s_barrier")
            continue
        if k in DMA_SLOTS and not last:
            if "nodma" not in OPT:
                a(dma_op(dmai))
            dmai += 1
            continue
        if (k & 1) == 0 and k not in FREE_EVEN:
            if exq:
                j = exq.pop(0)
                if "nosm" not in OPT and "noexp" not in OPT:
                    a(exp_op(j, par))
                if j & 1:
                    pend_cv.append(j)
                continue
        nxt = []
        for kk in (k + 1, k + 2):
            if kk < NS:
                kd, _, ff = mfma_info(kk)
                if ff is not None and not (last and kd == "qk"):
                    nxt.append(ff)
        light = 1
        if sc.need(nxt):
            light -= 1
        did_read = False
        if rdq and k > BAR:
            sc.read(*rdq.pop(0))
            did_read = True
        if did_read and not (len(cvq) >= CVQ_MAX and light > 0):
            pass
        elif cvq:
            if did_read:
                light -= 1
            j = cvq.pop(0)
            if last and k < 64:
                a("s_nop 0")
            if "nosm" not in OPT and "nocvt" not in OPT:
                a(cvt_op(j, par))
        else:
            light += 1
        while light > 0 and misc and misc[0][0] <= k:
            for t in misc.pop(0)[1]:
                a(t)
            light -= 1
    cvq += pend_cv
    if last:
        assert not cvq
    assert all(j >= 40 for j in cvq), cvq
    sc.carry = [j - 64 for j in cvq]
    for r in rdq:
        sc.read(*r)
    for m in misc:
        for t in m[1]:
            a(t)
    assert not exq
    if par == 0 and not last:
        a(f"v_xor_b32 v{V_AB}, 0x10000, v{V_AB}")


def rowmax(a, qb, m, extra=None):
    regs = [S_(kvb, qb) + r for kvb in range(4) for r in range(4)]
    if extra is None:
        a(f"v_max3_f32 v{m}, v{regs[0]}, v{regs[1]}, v{regs[2]}")
        for i in range(3, 15, 2):
            a(f"v_max3_f32 v{m}, v{m}, v{regs[i]}, v{regs[i+1]}")
        a(f"v_max_f32 v{m}, v{m}, v{regs[15]}")
    else:
        a(f"v_max3_f32 v{m}, v{regs[0]}, v{regs[1]}, v{extra}")
        for i in range(2, 16, 2):
            a(f"v_max3_f32 v{m}, v{m}, v{regs[i]}, v{regs[i+1]}")


def xlane_max(a, ms):
    for sw in ("v_permlane16_swap_b32", "v_permlane32_swap_b32"):
        for m in ms:
            a(f"v_mov_b32 v{m+1}, v{m}")
        a("s_nop 1")
        for m in ms:
            a(f"{sw} v{m}, v{m+1}")
        a("s_nop 1")
        for m in ms:
            a(f"v_max_f32 v{m}, v{m}, v{m+1}")


def gen_main(a):
    K = NAME + "_kernel"
    a.raw(".p2align 8")
    a.raw(f".globl {K}")
    a.raw(f".type {K},@function")
    a.label(K)
    a("s_cmp_ge_u32 s2, 256")
    a("s_cbranch_scc1 L_done")
    a("s_load_dwordx2 s[26:27], s[0:1], 0")
    a("s_load_dwordx2 s[28:29], s[0:1], 56")
    a("s_load_dwordx2 s[30:31], s[0:1], 72")
    if "stamp" in OPT:
        a("s_load_dwordx2 s[56:57], s[0:1], 64")
        a("s_memtime s[44:45]")
        a("s_memrealtime s[46:47]")
    a(f"v_lshrrev_b32 v{V_T}, 6, v0")
    a(f"v_and_b32 v{V_T+1}, 63, v0")
    a(f"v_readfirstlane_b32 s32, v{V_T}")
    a(f"v_lshlrev_b32 v{V_L16}, 4, v{V_T+1}")
    a("s_and_b32 s33, s2, 7")
    a("s_lshr_b32 s34, s2, 3")
    a("s_and_b32 s35, s34, 3")
    a("s_lshl_b32 s36, s33, 2")
    a("s_add_u32 s35, s35, s36")
    a("s_lshr_b32 s36, s34, 2")
    a("s_lshl_b32 s35, s35, 11")
    a("s_lshl_b32 s36, s36, 8")
    a("s_add_u32 s35, s35, s36")
    a("s_lshl_b32 s36, s32, 6")
    a("s_add_u32 s35, s35, s36")
    a("s_lshl_b32 s35, s35, 8")
    a("s_add_u32 s36, s35, 0x1000")
    a("s_add_u32 s37, s35, 0x2000")
    a("s_add_u32 s38, s35, 0x3000")
    a(f"s_lshl_b32 s{S_HB}, s33, 21")
    a(f"s_lshl_b32 s{S_W8K}, s32, 13")
    a(f"s_mov_b32 s{S_FLAG}, 0")
    a(f"v_and_b32 v{V_T+2}, 15, v{V_T+1}")
    a(f"v_lshrrev_b32 v{V_T+3}, 4, v{V_T+1}")
    a(f"v_lshlrev_b32 v{V_QOFF}, 8, v{V_T+2}")
    a(f"v_lshl_add_u32 v{V_QOFF}, v{V_T+3}, 4, v{V_QOFF}")
    a(f"v_add_u32 v{V_DMA0}, s{S_W8K}, v{V_L16}")
    a(f"v_add_u32 v{V_DMA1}, 0x1000, v{V_DMA0}")
    a("s_waitcnt lgkmcnt(0)")
    srd(a, S_WS, 30, 0x10000000)
    srd(a, S_Q, 26, 0x1000000)
    srd(a, S_OUT, 28, 0x1000000)
    a(f"s_mov_b32 s{S_DOFF}, s{S_HB}")
    a(f"s_mov_b32 s{S_SLB}, s{S_W8K}")
    dma_tile(a)
    for qb in range(4):
        for ds in range(4):
            a(f"buffer_load_dwordx4 a[{Q_(qb,ds)}:{Q_(qb,ds)+3}], v{V_QOFF}, s[{S_Q}:{S_Q+3}], s{S_ROW+qb} offen offset:{64*ds}")
    dma_tile(a)
    dma_tile(a)
    dma_tile(a)
    for i in range(128):
        a(f"v_accvgpr_write_b32 a{i}, 0")
    for i in range(16):
        a(f"v_accvgpr_write_b32 a{L_(0)+i}, 0")
    a(f"v_mov_b32 v{V_T}, 0x3f803f80")
    for i in range(4):
        a(f"v_accvgpr_write_b32 a{A_ONES+i}, v{V_T}")
    a(f"v_mov_b32 v{V_AB}, v{V_L16}")
    a("s_waitcnt vmcnt(24)")
    a("s_barrier")
    sc = Sched(a)
    for f in range(8):
        sc.read(f, V_AB, SEC_B + f * 1024)
    for k in range(64):
        sc.time += 1
        kvb, qb, ds = k >> 4, (k >> 2) & 3, k & 3
        f = 4 * (kvb & 1) + ds
        sc.need([f])
        d = S_(kvb, qb)
        c = "0" if ds == 0 else f"v[{d}:{d+3}]"
        a(f"{MF} v[{d}:{d+3}], a[{F_(f)}:{F_(f)+3}], a[{Q_(qb,ds)}:{Q_(qb,ds)+3}], {c}")
        if qb == 3:
            if kvb < 2:
                sc.read(f, V_AB, SEC_A + (kvb * 4 + ds) * 1024)
            else:
                sc.read(f, V_AB, SEC_C + f * 1024)
    a("s_nop 15")
    ms = [V_T + 2 * qb for qb in range(4)]
    for qb in range(4):
        rowmax(a, qb, ms[qb])
    xlane_max(a, ms)
    for qb in range(4):
        for r in range(4):
            a(f"v_sub_f32 v{NEGM+4*qb+r}, 0, v{ms[qb]}")
    for kvb in range(4):
        for qb in range(4):
            for r in range(4):
                s = S_(kvb, qb) + r
                a(f"v_add_f32 v{s}, v{s}, v{NEGM+4*qb}")
    for j in range(16, 64):
        a(exp_op(j, 1))
        if (j & 1) == 0 and j > 16:
            a(cvt_op(j - 1, 1))
    a("s_waitcnt lgkmcnt(0)")
    a(cvt_op(63, 1))
    scratch = Asm()
    sc2 = Sched(scratch)
    for _ in range(3):
        gen_body(scratch, sc2, 0)
        gen_body(scratch, sc2, 1)
    state0 = (list(sc2.carry), [(f, sc2.time - t) for f, t in sc2.pending])
    sc2.a = a
    sc = sc2
    a(f"s_mov_b32 s{S_CNT}, 15")
    if "stamp" in OPT:
        a("s_memtime s[48:49]")
        a("s_memrealtime s[64:65]")
        a("s_waitcnt lgkmcnt(0)")
    a.raw(".p2align 6")
    a.label("L_loop")
    gen_body(a, sc, 0)
    gen_body(a, sc, 1)
    assert state0 == (list(sc.carry), [(f, sc.time - t) for f, t in sc.pending])
    a(f"s_sub_u32 s{S_CNT}, s{S_CNT}, 1")
    a(f"s_cmp_lg_u32 s{S_CNT}, 0")
    a("s_cbranch_scc1 L_loop")
    if "stamp" in OPT:
        a("s_memtime s[50:51]")
        a("s_memrealtime s[66:67]")
        a("s_waitcnt lgkmcnt(0)")
    gen_body(a, sc, 0)
    gen_body(a, sc, 1, last=True)
    a.label("L_epi")
    a("s_waitcnt vmcnt(0)")
    a("s_nop 15")
    a(f"s_mov_b32 s{S_TMP}, {f32bits(2.0**100):#x}")
    for qb in range(4):
        a(f"v_accvgpr_read_b32 v{V_R+qb}, a{L_(qb)}")
    a(f"v_max3_f32 v{V_T}, v{V_R}, v{V_R+1}, v{V_R+2}")
    a(f"v_max_f32 v{V_T}, v{V_T}, v{V_R+3}")
    a(f"v_add_f32 v{V_T+1}, v{V_R}, v{V_R+1}")
    a(f"v_add_f32 v{V_T+2}, v{V_R+2}, v{V_R+3}")
    a(f"v_cmp_nle_f32 s[40:41], v{V_T}, s{S_TMP}")
    a(f"v_cmp_u_f32 s[42:43], v{V_T+1}, v{V_T+2}")
    for qb in range(4):
        a(f"v_rcp_f32 v{V_R+qb}, v{V_R+qb}")
    a(f"v_mov_b32 v{V_T}, 0")
    a(f"v_mov_b32 v{V_T+1}, 0")
    for qb in range(4):
        for db in range(8):
            o = O_(qb, db)
            for r in range(0, 4, 2):
                t = 64 + ((db * 4 + r) & 7)
                a(f"v_accvgpr_read_b32 v{t}, a{o+r}")
                a(f"v_accvgpr_read_b32 v{t+1}, a{o+r+1}")
                a(f"v_mul_f32 v{t}, v{t}, v{V_R+qb}")
                a(f"v_mul_f32 v{t+1}, v{t+1}, v{V_R+qb}")
                a(f"v_fma_f32 v{V_T}, v{t}, 0, v{V_T}")
                a(f"v_fma_f32 v{V_T+1}, v{t+1}, 0, v{V_T+1}")
                a(f"v_cvt_pk_bf16_f32 v{qb*16+db*2+(r>>1)}, v{t}, v{t+1}")
    a(f"v_cmp_u_f32 vcc, v{V_T}, v{V_T+1}")
    a("s_or_b64 s[40:41], s[40:41], s[42:43]")
    a("s_or_b64 vcc, vcc, s[40:41]")
    a(f"s_cmp_lg_u32 s{S_FLAG}, 0")
    a("s_cbranch_scc1 L_store")
    if "nofb" not in OPT:
        a("s_cbranch_vccnz L_fallback")
    a.label("L_store")
    for qb in range(4):
        for e in range(4):
            r = qb * 16 + e * 4
            a(f"buffer_store_dwordx4 v[{r}:{r+3}], v{V_QOFF}, s[{S_OUT}:{S_OUT+3}], s{S_ROW+qb} offen offset:{e*64}")
    if "stamp" in OPT:
        a("s_memtime s[52:53]")
        a("s_memrealtime s[54:55]")
        a("s_waitcnt lgkmcnt(0)")
        a("s_sub_u32 s52, s52, s44")
        a("s_sub_u32 s54, s54, s46")
        a("s_sub_u32 s50, s50, s48")
        a("s_sub_u32 s48, s48, s44")
        a("s_sub_u32 s66, s66, s64")
        a("s_sub_u32 s64, s64, s46")
        srd(a, 60, 56, 256)
        a("s_lshl_b32 s58, s2, 5")
        a("s_cmp_ge_u32 s2, 8")
        a("s_cbranch_scc1 L_done")
        a("s_cmp_lg_u32 s32, 0")
        a("s_cbranch_scc1 L_done")
        a("s_nop 4")
        a("v_mov_b32 v70, s52")
        a("v_mov_b32 v71, s54")
        a("v_mov_b32 v72, s50")
        a("v_mov_b32 v73, s48")
        a("v_mov_b32 v74, 0")
        a("s_mov_b64 exec, 1")
        a("v_mov_b32 v76, s66")
        a("v_mov_b32 v77, s64")
        a("v_mov_b32 v78, 0")
        a("v_mov_b32 v79, 0")
        a("buffer_store_dwordx4 v[70:73], v74, s[60:63], s58 offen")
        a("buffer_store_dwordx4 v[76:79], v74, s[60:63], s58 offen offset:16")
    a.label("L_done")
    a("s_endpgm")

    a.label("L_fallback")
    a(f"s_mov_b32 s{S_FLAG}, 1")
    for i in range(128):
        a(f"v_accvgpr_write_b32 a{i}, 0")
    for i in range(16):
        a(f"v_accvgpr_write_b32 a{L_(0)+i}, 0")
    for qb in range(4):
        a(f"v_mov_b32 v{V_M+qb}, {f32bits(-3.0e38):#x}")
    a(f"s_mov_b32 s39, s{S_HB}")
    a(f"s_add_u32 s{S_SLB}, s{S_HB}, {SEC_B}")
    a(f"s_mov_b32 s{S_CNT}, 32")
    a.label("L_fb_loop")

    def fb_load8(setup):
        a(setup)
        for q4 in range(2):
            for i in range(4):
                f = q4 * 4 + i
                a(f"buffer_load_dwordx4 a[{F_(f)}:{F_(f)+3}], v{V_L16}, s[{S_WS}:{S_WS+3}], s{S_DOFF} offen offset:{1024*i}")
            a(f"s_add_u32 s{S_DOFF}, s{S_DOFF}, 0x1000")
        a("s_waitcnt vmcnt(0)")
    for half in range(2):
        fb_load8(f"s_mov_b32 s{S_DOFF}, s{S_SLB}" if half == 0 else f"s_mov_b32 s{S_DOFF}, s39")
        for kv2 in range(2):
            kvb = half * 2 + kv2
            for qb in range(4):
                d = S_(kvb, qb)
                for ds in range(4):
                    f = kv2 * 4 + ds
                    c = "0" if ds == 0 else f"v[{d}:{d+3}]"
                    a(f"{MF} v[{d}:{d+3}], a[{F_(f)}:{F_(f)+3}], a[{Q_(qb,ds)}:{Q_(qb,ds)+3}], {c}")
        a("s_nop 15")
    for qb in range(4):
        rowmax(a, qb, ms[qb], extra=V_M + qb)
    xlane_max(a, ms)
    for qb in range(4):
        m = ms[qb]
        al = m + 1
        a(f"v_sub_f32 v{al}, v{V_M+qb}, v{m}")
        a(f"v_exp_f32 v{al}, v{al}")
        a(f"v_mov_b32 v{V_M+qb}, v{m}")
        regs = [O_(qb, db) + r for db in range(8) for r in range(4)] + [L_(qb) + r for r in range(4)]
        for o in regs:
            a(f"v_accvgpr_read_b32 v{V_T+8}, a{o}")
            a(f"v_mul_f32 v{V_T+8}, v{V_T+8}, v{al}")
            a(f"v_accvgpr_write_b32 a{o}, v{V_T+8}")
    for kvb in range(4):
        for qb in range(4):
            for r in range(4):
                s = S_(kvb, qb) + r
                a(f"v_sub_f32 v{s}, v{s}, v{ms[qb]}")
    for s in range(64):
        a(f"v_exp_f32 v{s}, v{s}")
    a("s_nop 0")
    for kvb in range(4):
        for qb in range(4):
            for r in range(0, 4, 2):
                s = S_(kvb, qb) + r
                p = P_(0, kvb >> 1, qb) + (kvb & 1) * 2 + (r >> 1)
                a(f"v_cvt_pk_bf16_f32 v{p}, v{s}, v{s+1}")
    a("s_nop 1")
    for qb in range(4):
        for s in range(2):
            p = P_(0, s, qb)
            a(f"{MF} a[{L_(qb)}:{L_(qb)+3}], a[{A_ONES}:{A_ONES+3}], v[{p}:{p+3}], a[{L_(qb)}:{L_(qb)+3}]")
    for half in range(2):
        fb_load8(f"s_add_u32 s{S_DOFF}, s39, {SLOTB + SEC_B + half * 8192}")
        for f in range(8):
            fv = half * 8 + f
            db, s = fv >> 1, fv & 1
            for qb in range(4):
                p = P_(0, s, qb)
                o = O_(qb, db)
                a(f"{MF} a[{o}:{o+3}], a[{F_(f)}:{F_(f)+3}], v[{p}:{p+3}], a[{o}:{o+3}]")
        a("s_nop 15")
    a(f"s_add_u32 s{S_SLB}, s39, {SEC_C}")
    a(f"s_add_u32 s39, s39, {SLOTB}")
    a(f"s_sub_u32 s{S_CNT}, s{S_CNT}, 1")
    a(f"s_cmp_lg_u32 s{S_CNT}, 0")
    a("s_cbranch_scc1 L_fb_loop")
    a("s_branch L_epi")


def descriptor(a, name, vgpr, sgpr, accum):
    a.raw(f".amdhsa_kernel {name}")
    a.raw(f"  .amdhsa_next_free_vgpr {vgpr}")
    a.raw(f"  .amdhsa_next_free_sgpr {sgpr}")
    a.raw(f"  .amdhsa_accum_offset {accum}")
    a.raw("  .amdhsa_group_segment_fixed_size 0")
    a.raw("  .amdhsa_kernarg_size 80")
    a.raw("  .amdhsa_user_sgpr_count 2")
    a.raw("  .amdhsa_user_sgpr_kernarg_segment_ptr 1")
    a.raw("  .amdhsa_system_sgpr_workgroup_id_x 1")
    a.raw(".end_amdhsa_kernel")


def main():
    out = sys.argv[1] if len(sys.argv) > 1 else OUT
    a = Asm()
    a.raw(HEADER.rstrip("\n"))
    a.raw("; @launch kernel=kvq_dequant_kernel grid=(512,1,1) block=(256,1,1) lds=0")
    a.raw(f"; @launch kernel={NAME}_kernel grid=(256,1,1) block=(256,1,1) lds={NSLOT*SLOTB}")
    a.raw('.amdgcn_target "amdgcn-amd-amdhsa--gfx950"')
    a.raw(".text")
    gen_prepass(a)
    gen_main(a)
    a.raw('.section .rodata,"a"')
    a.raw(".p2align 6")
    descriptor(a, "kvq_dequant_kernel", 128, 64, 128)
    a.raw(".p2align 6")
    descriptor(a, NAME + "_kernel", 512, 72, 256)
    open(out, "w").write(a.text())


if __name__ == "__main__":
    main()
```

```python
import math
import os
import struct
import sys

OPT = set(os.environ.get("GENOPT", "").split(",")) | {"noinv", "nt", "ntst", "dmasc1"}
OPT -= set(os.environ.get("GENNOT", "").split(","))
NAME = "standalone__kv_cache_quant_int4_int2_kv_with_per_channel_or_per_token_scales__prompt"
OUT = f"cdna_kernels/{NAME}.s"

HEADER = """; Kernarg layout for this problem (80 bytes, ptrs only, base s[0:1]):
;   offset   0: d_in[0] q  shape=(1, 32, 2048, 128) dtype=bfloat16 strides=(16777216, 524288, 256, 2) contiguous=True
;   offset   8: d_in[1] qk  shape=(1, 8, 2048, 128) dtype=int32 strides=(8388608, 1048576, 512, 4) contiguous=True
;   offset  16: d_in[2] qv  shape=(1, 8, 2048, 128) dtype=int32 strides=(8388608, 1048576, 512, 4) contiguous=True
;   offset  24: d_in[3] k_scales  shape=(1, 8, 32, 128) dtype=bfloat16 strides=(65536, 8192, 256, 2) contiguous=True
;   offset  32: d_in[4] k_zeros  shape=(1, 8, 32, 128) dtype=bfloat16 strides=(65536, 8192, 256, 2) contiguous=True
;   offset  40: d_in[5] v_scales  shape=(1, 8, 2048, 1) dtype=bfloat16 strides=(32768, 4096, 2, 2) contiguous=True
;   offset  48: d_in[6] v_zeros  shape=(1, 8, 2048, 1) dtype=bfloat16 strides=(32768, 4096, 2, 2) contiguous=True
;
; Phase 1: it dequantises its own 64-token K/V tile (same bf16 rounding steps as the reference; the
;   softmax scale * log2(e) is folded into K) into d_ws as ready-to-use MFMA fragments (write-through
;   need (agent-scope loads); if a producer never shows up they dequantise the whole head themselves.
; Phase 2: flash attention for (q head, 256 query rows), 4 waves x 64 rows, kv tiles visited
;   through the MFMA C operand), P = exp2(S^T), O^T += V^T P^T, row sums via a ones-operand MFMA.
;   If a later tile makes that reference max unsafe (row sum too large / non finite output) the wave
"""


def f32bits(x):
    return struct.unpack("<I", struct.pack("<f", x))[0]


class Asm:
    def __init__(self):
        self.lines = []

    def __call__(self, s):
        if "nt" in OPT and s.startswith("buffer_load_dwordx4") and " lds" not in s and ("s[44:47]" in s or "s[48:51]" in s or "s[8:11]" in s):
            s += " nt"
        if "dmasc1" in OPT and s.startswith("buffer_load_dwordx4") and "s[4:7]" in s:
            s = s.replace(" lds", " sc1 lds") if " lds" in s else s + " sc1"
        if "ntst" in OPT and s.startswith("buffer_store_dwordx4") and "s[12:15]" in s:
            s += " nt"
        self.lines.append("    " + s)

    def label(self, s):
        self.lines.append(s + ":")

    def raw(self, s):
        self.lines.append(s)

    def text(self):
        return "\n".join(self.lines) + "\n"


def srd(a, d, base, nbytes):
    a(f"s_mov_b32 s{d}, s{base}")
    a(f"s_and_b32 s{d+1}, s{base+1}, 0xffff")
    a(f"s_mov_b32 s{d+2}, {nbytes:#x}")
    a(f"s_mov_b32 s{d+3}, 0x00020000")


S_QK, S_QV, S_KS, S_KZ, S_VS, S_VZ, S_DBG = 44, 48, 52, 56, 60, 64, 68
S_TILE, S_TASK = 72, 73
S_MASK, S_CS = 84, 86
S_I8, S_I4, S_MODE, S_PCNT, S_HELPED = 88, 89, 90, 91, 92
KD, KSC, KZR = 16, 48, 64
WW, ZZ, SS, TT, OO = 80, 88, 96, 104, 108
VD, VRAW, VUN = 128, 192, 200
V_KIN, V_KSO, V_VIN, V_VSO, V_VOUT, V_LW, V_NEED, V_VST, V_VRD = 240, 241, 242, 243, 244, 245, 246, 247, 191


def deq_lane_k(a, lane):
    a(f"v_and_b32 v6, 15, v{lane}")
    a(f"v_lshrrev_b32 v7, 4, v{lane}")
    a(f"v_lshlrev_b32 v{V_KIN}, 9, v6")
    a(f"v_lshl_add_u32 v{V_KIN}, v7, 5, v{V_KIN}")
    a(f"v_lshlrev_b32 v{V_KSO}, 4, v7")
    a(f"v_and_b32 v8, 31, v{lane}")
    a(f"v_lshrrev_b32 v9, 5, v{lane}")
    a(f"v_lshlrev_b32 v{V_VIN}, 11, v9")
    a(f"v_lshl_add_u32 v{V_VIN}, v8, 4, v{V_VIN}")
    a(f"v_lshlrev_b32 v{V_VSO}, 3, v9")


def deq_lane_v(a):
    a("v_lshrrev_b32 v10, 3, v8")
    a(f"v_lshlrev_b32 v{V_VOUT}, 12, v10")
    a("v_and_b32 v10, 1, v8")
    a(f"v_lshl_add_u32 v{V_VOUT}, v10, 11, v{V_VOUT}")
    a("v_bfe_u32 v10, v8, 1, 2")
    a(f"v_lshl_add_u32 v{V_VOUT}, v10, 6, v{V_VOUT}")
    a(f"v_lshl_add_u32 v{V_VOUT}, v9, 8, v{V_VOUT}")
    a(f"v_lshlrev_b32 v{V_VST}, 11, v9")
    a(f"v_lshl_add_u32 v{V_VST}, v8, 4, v{V_VST}")
    a("s_lshl_b32 s75, s78, 10")
    a("s_lshl_b32 s76, s79, 9")
    a("s_add_u32 s75, s75, s76")
    a(f"s_add_u32 s75, s75, {32768 + 8192}")
    a(f"v_add_u32 v{V_VOUT}, s75, v{V_VOUT}")
    a(f"v_add_u32 v{V_VRD}, s75, v{V_VST}")


def deq_loads(a):
    a("s_lshl_b32 s75, s33, 5")
    a(f"s_add_u32 s75, s75, s{S_TILE}")
    a("s_lshl_b32 s76, s75, 8")
    a("s_lshl_b32 s77, s75, 6")
    a(f"s_lshl_b32 s74, s{S_TASK}, 4")
    a("s_add_u32 s74, s74, s77")
    a("s_lshl_b32 s74, s74, 9")
    for i in range(4):
        a(f"buffer_load_dwordx4 v[{KD+8*i}:{KD+8*i+3}], v{V_KIN}, s[{S_QK}:{S_QK+3}], s74 offen offset:{128*i}")
        a(f"buffer_load_dwordx4 v[{KD+8*i+4}:{KD+8*i+7}], v{V_KIN}, s[{S_QK}:{S_QK+3}], s74 offen offset:{128*i+16}")
    for i in range(4):
        a(f"buffer_load_dwordx4 v[{KSC+4*i}:{KSC+4*i+3}], v{V_KSO}, s[{S_KS}:{S_KS+3}], s76 offen offset:{64*i}")
        a(f"buffer_load_dwordx4 v[{KZR+4*i}:{KZR+4*i+3}], v{V_KSO}, s[{S_KZ}:{S_KZ+3}], s76 offen offset:{64*i}")
    a(f"s_lshr_b32 s78, s{S_TASK}, 1")
    a(f"s_and_b32 s79, s{S_TASK}, 1")
    a("s_lshl_b32 s75, s78, 5")
    a("s_add_u32 s77, s77, s75")
    a("s_lshl_b32 s75, s79, 3")
    a("s_add_u32 s77, s77, s75")
    a("s_lshl_b32 s80, s77, 1")
    a("s_lshl_b32 s77, s77, 9")
    a("s_add_u32 s81, s77, 8192")
    for j in range(8):
        so = "s77" if j < 4 else "s81"
        a(f"buffer_load_dwordx4 v[{VD+4*j}:{VD+4*j+3}], v{V_VIN}, s[{S_QV}:{S_QV+3}], {so} offen offset:{512*(j&3)}")
    a(f"buffer_load_dwordx2 v[{VRAW}:{VRAW+1}], v{V_VSO}, s[{S_VS}:{S_VS+3}], s80 offen")
    a(f"buffer_load_dwordx2 v[{VRAW+2}:{VRAW+3}], v{V_VSO}, s[{S_VS}:{S_VS+3}], s80 offen offset:32")
    a(f"buffer_load_dwordx2 v[{VRAW+4}:{VRAW+5}], v{V_VSO}, s[{S_VZ}:{S_VZ+3}], s80 offen")
    a(f"buffer_load_dwordx2 v[{VRAW+6}:{VRAW+7}], v{V_VSO}, s[{S_VZ}:{S_VZ+3}], s80 offen offset:32")


def deq_outoffs(a):
    a(f"s_lshl_b32 s82, s{S_TILE}, 15")
    a("s_add_u32 s83, s82, 0x8000")
    a("s_and_b32 s83, s83, 0xfffff")
    a("s_add_u32 s83, s83, 8192")
    a("s_lshl_b32 s75, s78, 10")
    a("s_add_u32 s83, s83, s75")
    a("s_lshl_b32 s75, s79, 9")
    a("s_add_u32 s83, s83, s75")
    a(f"s_add_u32 s83, s83, s{S_HB}")
    a(f"s_lshl_b32 s75, s{S_TASK}, 12")
    a("s_add_u32 s82, s82, s75")
    a("s_sub_u32 s82, s82, 8192")
    a("s_and_b32 s82, s82, 0xfffff")
    a(f"s_add_u32 s82, s82, s{S_HB}")


def rnd_unpack(a):
    for p in range(4):
        a(f"v_cvt_pk_bf16_f32 v{TT+p}, v{WW+2*p}, v{WW+2*p+1}")
    for p in range(4):
        a(f"v_lshlrev_b32 v{WW+2*p}, 16, v{TT+p}")
        a(f"v_and_b32 v{WW+2*p+1}, s{S_MASK}, v{TT+p}")


def deq_compute(a, tag, extra=0):
    a(f"s_waitcnt vmcnt({12+extra})")
    a(f"s_mov_b32 s{S_I8}, 0")
    a(f"s_mov_b32 s{S_I4}, 0")
    a.label(f"L_dk{tag}")
    a(f"s_set_gpr_idx_on s{S_I8}, gpr_idx(SRC0)")
    a("s_nop 1")
    for k in range(8):
        a(f"v_cvt_f32_i32 v{WW+k}, v{KD+k}")
    a(f"s_set_gpr_idx_idx s{S_I4}")
    a("s_set_gpr_idx_mode gpr_idx(SRC1)")
    a("s_nop 1")
    for p in range(4):
        a(f"v_lshlrev_b32 v{ZZ+2*p}, 16, v{KZR+p}")
        a(f"v_and_b32 v{ZZ+2*p+1}, s{S_MASK}, v{KZR+p}")
        a(f"v_lshlrev_b32 v{SS+2*p}, 16, v{KSC+p}")
        a(f"v_and_b32 v{SS+2*p+1}, s{S_MASK}, v{KSC+p}")
    a("s_set_gpr_idx_off")
    a("s_nop 1")
    for p in range(4):
        a(f"v_pk_add_f32 v[{WW+2*p}:{WW+2*p+1}], v[{WW+2*p}:{WW+2*p+1}], v[{ZZ+2*p}:{ZZ+2*p+1}] neg_lo:[0,1] neg_hi:[0,1]")
    rnd_unpack(a)
    for p in range(4):
        a(f"v_pk_mul_f32 v[{WW+2*p}:{WW+2*p+1}], v[{WW+2*p}:{WW+2*p+1}], v[{SS+2*p}:{SS+2*p+1}]")
    rnd_unpack(a)
    for p in range(4):
        a(f"v_pk_mul_f32 v[{WW+2*p}:{WW+2*p+1}], v[{WW+2*p}:{WW+2*p+1}], s[{S_CS}:{S_CS+1}]")
    for p in range(4):
        a(f"v_cvt_pk_bf16_f32 v{OO+p}, v{WW+2*p}, v{WW+2*p+1}")
    a(f"buffer_store_dwordx4 v[{OO}:{OO+3}], v{V_L16}, s[{S_WS}:{S_WS+3}], s82 offen sc1")
    a(f"ds_write_b128 v{V_LW}, v[{OO}:{OO+3}]")
    a(f"v_add_u32 v{V_LW}, 0x400, v{V_LW}")
    a("s_add_u32 s82, s82, 0x400")
    a(f"s_add_u32 s{S_I8}, s{S_I8}, 8")
    a(f"s_add_u32 s{S_I4}, s{S_I4}, 4")
    a(f"s_cmp_lt_u32 s{S_I4}, 16")
    a(f"s_cbranch_scc1 L_dk{tag}")
    a(f"s_waitcnt vmcnt({4+extra})")
    for p in range(4):
        a(f"v_lshlrev_b32 v{SS+2*p}, 16, v{VRAW+p}")
        a(f"v_and_b32 v{SS+2*p+1}, s{S_MASK}, v{VRAW+p}")
        a(f"v_lshlrev_b32 v{ZZ+2*p}, 16, v{VRAW+4+p}")
        a(f"v_and_b32 v{ZZ+2*p+1}, s{S_MASK}, v{VRAW+4+p}")
    a(f"s_mov_b32 s{S_I4}, 0")
    a.label(f"L_dv{tag}")
    a(f"s_set_gpr_idx_on s{S_I4}, gpr_idx(SRC0)")
    a("s_nop 1")
    for j in range(8):
        a(f"v_cvt_f32_i32 v{WW+j}, v{VD+4*j}")
    a("s_set_gpr_idx_off")
    a("s_nop 1")
    for p in range(4):
        a(f"v_pk_add_f32 v[{WW+2*p}:{WW+2*p+1}], v[{WW+2*p}:{WW+2*p+1}], v[{ZZ+2*p}:{ZZ+2*p+1}] neg_lo:[0,1] neg_hi:[0,1]")
    rnd_unpack(a)
    for p in range(4):
        a(f"v_pk_mul_f32 v[{WW+2*p}:{WW+2*p+1}], v[{WW+2*p}:{WW+2*p+1}], v[{SS+2*p}:{SS+2*p+1}]")
    for p in range(4):
        a(f"v_cvt_pk_bf16_f32 v{OO+p}, v{WW+2*p}, v{WW+2*p+1}")
    a(f"ds_write_b128 v{V_VOUT}, v[{OO}:{OO+3}]")
    a(f"v_add_u32 v{V_VOUT}, 16, v{V_VOUT}")
    a(f"s_add_u32 s{S_I4}, s{S_I4}, 1")
    a(f"s_cmp_lt_u32 s{S_I4}, 4")
    a(f"s_cbranch_scc1 L_dv{tag}")
    a(f"v_add_u32 v{V_VOUT}, -64, v{V_VOUT}")
    for k in range(4):
        a(f"ds_read_b128 v[{KD+4*k}:{KD+4*k+3}], v{V_VRD} offset:{4096*k}")
    for k in range(4):
        a(f"s_waitcnt lgkmcnt({3-k})")
        a(f"buffer_store_dwordx4 v[{KD+4*k}:{KD+4*k+3}], v{V_VST}, s[{S_WS}:{S_WS+3}], s83 offen sc1")
        if k < 3:
            a("s_add_u32 s83, s83, 0x1000")


def poll(a, tag, masked, pre_barrier):
    a(f"v_mov_b32 v{V_T+2}, {NSLOT*SLOTB + 4096 + 64 * int(tag)}")
    a("s_cmp_lg_u32 s32, 0")
    a(f"s_cbranch_scc1 L_pw{tag}")
    a(f"s_mov_b32 s{S_MODE}, 1")
    a(f"s_cmp_lg_u32 s{S_HELPED}, 0")
    a(f"s_cbranch_scc1 L_pok{tag}")
    a(f"s_mov_b32 s{S_PCNT}, 0")
    a.label(f"L_poll{tag}")
    a(f"buffer_load_ubyte v{V_T}, v{V_POLL}, s[{S_DBG}:{S_DBG+3}], 0 offen sc1")
    a(f"s_waitcnt vmcnt(0)")
    if masked:
        a(f"v_or_b32 v{V_T}, v{V_T}, v{V_NEED}")
    a(f"v_cmp_eq_u32 vcc, 0, v{V_T}")
    a(f"s_add_u32 s{S_PCNT}, s{S_PCNT}, 1")
    a("s_nop 3")
    a(f"s_cbranch_vccz L_pdone{tag}")
    a(f"s_sleep {SLEEP}")
    a(f"s_cmp_lt_u32 s{S_PCNT}, {0 if ('selfhelp' + tag) in OPT else 6000}")
    a(f"s_cbranch_scc1 L_poll{tag}")
    a(f"s_mov_b32 s{S_MODE}, 2")
    a.label(f"L_pdone{tag}")
    if "noinv" not in OPT:
        a("buffer_inv sc1")
        a("s_waitcnt vmcnt(0)")
    a.label(f"L_pok{tag}")
    a(f"v_mov_b32 v{V_T}, s{S_MODE}")
    a(f"ds_write_b32 v{V_T+2}, v{V_T}")
    a.label(f"L_pw{tag}")
    a(pre_barrier)
    a("s_barrier")
    a(f"ds_read_b32 v{V_T}, v{V_T+2}")
    a("s_waitcnt lgkmcnt(0)")
    a(f"v_readfirstlane_b32 s{S_MODE}, v{V_T}")
    a("s_nop 3")
    a(f"s_cmp_eq_u32 s{S_MODE}, 2")
    a("s_cbranch_scc1 L_selfhelp")


SLEEP = int(os.environ.get("SLEEP", "4"))


def O_(qb, db):
    return (qb * 8 + db) * 4


def Q_(qb, ds):
    return 128 + (qb * 4 + ds) * 4


def F_(i):
    return 192 + 4 * i


def L_(qb):
    return 224 + 4 * qb


A_ONES = 240


def S_(kvb, qb):
    return (kvb * 4 + qb) * 4


NEGM = 64
PB = 96


def P_(par, s, qb):
    return PB + par * 32 + (s * 4 + qb) * 4


V_L16 = 164
V_AB = 165
V_DMA0 = 168
V_DMA1 = 169
V_T = 170
V_QOFF = 180
V_M = 182
V_R = 186
V_POLL = 190

S_WS, S_Q, S_OUT = 4, 8, 12
S_CNT = 16
S_DOFF = 17
S_SLB = 19
S_TMP = 20
S_HB = 22
S_W8K = 23
S_FLAG = 24
S_ROW = 35

NSLOT = 4
SLOTB = 32768
MF = "v_mfma_f32_16x16x32_bf16"
SEC_A, SEC_B, SEC_C = 0, 8192, 24576


class Sched:
    def __init__(self, a, lead=6):
        self.a = a
        self.pending = []
        self.time = 0
        self.lead = lead
        self.carry = [-1]

    def read(self, frag, addr_v, off):
        if "nord" not in OPT:
            self.a(f"ds_read_b128 a[{F_(frag)}:{F_(frag)+3}], v{addr_v} offset:{off}")
        self.pending.append((frag, self.time))

    def need(self, frags, extra=""):
        idx = None
        for i, (f, t) in enumerate(self.pending):
            if f in frags:
                idx = i
        if idx is None:
            return False
        while idx + 1 < len(self.pending) and self.time - self.pending[idx + 1][1] >= self.lead:
            idx += 1
        n = len(self.pending) - 1 - idx
        self.a(f"s_waitcnt lgkmcnt({n})")
        self.pending = self.pending[idx + 1:]
        return True


def elem(j, par_cur):
    if j < 16:
        e, par = 48 + j, par_cur
    else:
        e, par = j - 16, par_cur ^ 1
    B, r = e >> 2, e & 3
    kvb, qb = B >> 2, B & 3
    return S_(kvb, qb) + r, P_(par, kvb >> 1, qb) + (kvb & 1) * 2 + (r >> 1)


def exp_op(j, par):
    s, _ = elem(j, par)
    return f"v_exp_f32 v{s}, v{s}"


def cvt_op(j, par):
    if j < 0:
        j, par = j + 64, par ^ 1
    s, p = elem(j, par)
    return f"v_cvt_pk_bf16_f32 v{p}, v{s-1}, v{s}"


def dma_op(i):
    v = V_DMA0 if i < 4 else V_DMA1
    return f"buffer_load_dwordx4 v{v}, s[{S_WS}:{S_WS+3}], s{S_DOFF} offen offset:{1024*(i&3)} lds"


def dma_tile(a):
    for i in range(8):
        if i == 0:
            a(f"s_mov_b32 m0, s{S_SLB}")
            a("s_nop 0")
        if i == 4:
            a(f"s_add_u32 m0, s{S_SLB}, 0x1000")
            a("s_nop 0")
        a(dma_op(i))
    a(f"s_add_u32 s{S_DOFF}, s{S_DOFF}, 0x8000")
    a(f"s_and_b32 s{S_DOFF}, s{S_DOFF}, 0xfffff")
    a(f"s_add_u32 s{S_SLB}, s{S_SLB}, 0x8000")
    a(f"s_and_b32 s{S_SLB}, s{S_SLB}, 0x1ffff")


NS = 136
PV0 = 72
BAR = 11
DMA_SLOTS = [21, 37, 53, 69, 85, 101, 117, 131]
FREE_EVEN = {10, 46, 90, 134}
CVQ_MAX = 5


def mfma_info(k):
    if k < 64:
        kvb, qb, ds = k >> 4, (k >> 2) & 3, k & 3
        return ("qk", (kvb, qb, ds), 4 * (kvb & 1) + ds)
    if k < PV0:
        return ("sum", ((k - 64) >> 1, (k - 64) & 1), None)
    i = k - PV0
    db, qb, s = i >> 3, (i >> 1) & 3, i & 1
    return ("pv", (db, qb, s), (2 * db + s) & 7)


def gen_body(a, sc, par, last=False, dma=True):
    ubase = ((par ^ 1)) * SLOTB
    exq = list(range(16 if last else 64))
    cvq = list(sc.carry)
    rdq = []
    misc = []
    if not last:
        misc.append((13, [f"s_mov_b32 m0, s{S_SLB}"]))
        misc.append((70, [f"s_add_u32 m0, s{S_SLB}, 0x1000"]))
        misc.append((132, [f"s_add_u32 s{S_DOFF}, s{S_DOFF}, 0x8000"]))
        misc.append((132, [f"s_and_b32 s{S_DOFF}, s{S_DOFF}, 0xfffff"]))
        misc.append((132, [f"s_add_u32 s{S_SLB}, s{S_SLB}, 0x8000"]))
        misc.append((132, [f"s_and_b32 s{S_SLB}, s{S_SLB}, 0x1ffff"]))
    dmai = 0
    pend_cv = []
    for k in range(NS):
        sc.time += 1
        kind, prm, f = mfma_info(k)
        units = 2
        if f is not None and not (last and kind == "qk"):
            assert all(r[0] != f for r in rdq), (k, f, rdq)
        if kind == "qk":
            kvb, qb, ds = prm
            if not last:
                if sc.need([f]):
                    pass
                d = S_(kvb, qb)
                c = f"v[{NEGM+4*qb}:{NEGM+4*qb+3}]" if ds == 0 else f"v[{d}:{d+3}]"
                a(f"{MF} v[{d}:{d+3}], a[{F_(f)}:{F_(f)+3}], a[{Q_(qb,ds)}:{Q_(qb,ds)+3}], {c}")
            if qb == 3:
                if kvb < 2:
                    if not last:
                        rdq.append((f, V_AB, ubase + SEC_A + (kvb * 4 + ds) * 1024))
                else:
                    rdq.append((f, V_AB, ubase + SEC_B + f * 1024))
        elif kind == "sum":
            qb, s = prm
            p = P_(par, s, qb)
            a(f"{MF} a[{L_(qb)}:{L_(qb)+3}], a[{A_ONES}:{A_ONES+3}], v[{p}:{p+3}], a[{L_(qb)}:{L_(qb)+3}]")
        else:
            db, qb, s = prm
            fv = 2 * db + s
            sc.need([f])
            p = P_(par, s, qb)
            o = O_(qb, db)
            a(f"{MF} a[{o}:{o+3}], a[{F_(f)}:{F_(f)+3}], v[{p}:{p+3}], a[{o}:{o+3}]")
            if qb == 3:
                if fv < 8:
                    rdq.append((f, V_AB, ubase + SEC_B + (fv + 8) * 1024))
                elif not last:
                    rdq.append((f, V_AB, ubase + SEC_C + (fv - 8) * 1024))
        cvq += pend_cv
        pend_cv = []
        if k == BAR:
            if last:
                a("s_waitcnt vmcnt(0) lgkmcnt(0)")
            else:
                a("s_waitcnt vmcnt(16) lgkmcnt(0)")
            sc.pending = []
            if "nobar" not in OPT:
                a("s_barrier")
            continue
        if k in DMA_SLOTS and not last:
            if "nodma" not in OPT:
                a(dma_op(dmai))
            dmai += 1
            continue
        if (k & 1) == 0 and k not in FREE_EVEN:
            if exq:
                j = exq.pop(0)
                if "nosm" not in OPT and "noexp" not in OPT:
                    a(exp_op(j, par))
                if j & 1:
                    pend_cv.append(j)
                continue
        nxt = []
        for kk in (k + 1, k + 2):
            if kk < NS:
                kd, _, ff = mfma_info(kk)
                if ff is not None and not (last and kd == "qk"):
                    nxt.append(ff)
        light = 1
        if sc.need(nxt):
            light -= 1
        did_read = False
        if rdq and k > BAR:
            sc.read(*rdq.pop(0))
            did_read = True
        if did_read and not (len(cvq) >= CVQ_MAX and light > 0):
            pass
        elif cvq:
            if did_read:
                light -= 1
            j = cvq.pop(0)
            if last and k < 64:
                a("s_nop 0")
            if "nosm" not in OPT and "nocvt" not in OPT:
                a(cvt_op(j, par))
        else:
            light += 1
        while light > 0 and misc and misc[0][0] <= k:
            for t in misc.pop(0)[1]:
                a(t)
            light -= 1
    cvq += pend_cv
    if last:
        assert not cvq
    assert all(j >= 40 for j in cvq), cvq
    sc.carry = [j - 64 for j in cvq]
    for r in rdq:
        sc.read(*r)
    for m in misc:
        for t in m[1]:
            a(t)
    assert not exq
    if par == 0 and not last:
        a(f"v_xor_b32 v{V_AB}, 0x10000, v{V_AB}")


def rowmax(a, qb, m, extra=None):
    regs = [S_(kvb, qb) + r for kvb in range(4) for r in range(4)]
    if extra is None:
        a(f"v_max3_f32 v{m}, v{regs[0]}, v{regs[1]}, v{regs[2]}")
        for i in range(3, 15, 2):
            a(f"v_max3_f32 v{m}, v{m}, v{regs[i]}, v{regs[i+1]}")
        a(f"v_max_f32 v{m}, v{m}, v{regs[15]}")
    else:
        a(f"v_max3_f32 v{m}, v{regs[0]}, v{regs[1]}, v{extra}")
        for i in range(2, 16, 2):
            a(f"v_max3_f32 v{m}, v{m}, v{regs[i]}, v{regs[i+1]}")


def xlane_max(a, ms):
    for sw in ("v_permlane16_swap_b32", "v_permlane32_swap_b32"):
        for m in ms:
            a(f"v_mov_b32 v{m+1}, v{m}")
        a("s_nop 1")
        for m in ms:
            a(f"{sw} v{m}, v{m+1}")
        a("s_nop 1")
        for m in ms:
            a(f"v_max_f32 v{m}, v{m}, v{m+1}")


def gen_main(a):
    K = NAME + "_kernel"
    a.raw(".p2align 8")
    a.raw(f".globl {K}")
    a.raw(f".type {K},@function")
    a.label(K)
    a("s_cmp_ge_u32 s2, 256")
    a("s_cbranch_scc1 L_done")
    a("s_load_dwordx4 s[92:95], s[0:1], 0")
    a("s_load_dwordx4 s[96:99], s[0:1], 16")
    a("s_load_dwordx4 s[24:27], s[0:1], 32")
    a("s_load_dwordx4 s[28:31], s[0:1], 48")
    a("s_load_dwordx4 s[88:91], s[0:1], 64")
    if "tl" in OPT:
        a("s_memrealtime s[100:101]")
    a(f"v_lshrrev_b32 v{V_T}, 6, v0")
    a(f"v_and_b32 v{V_T+1}, 63, v0")
    a(f"v_readfirstlane_b32 s32, v{V_T}")
    if "scramble" in OPT:
        a("s_lshr_b32 s33, s2, 5")
        a("s_and_b32 s34, s2, 31")
    else:
        a("s_and_b32 s33, s2, 7")
        a("s_lshr_b32 s34, s2, 3")
    a(f"s_mov_b32 s{S_TILE}, s34")
    a(f"s_mov_b32 s{S_TASK}, s32")
    deq_lane_k(a, V_T + 1)
    a("s_waitcnt lgkmcnt(0)")
    srd(a, S_QK, 94, 0x800000)
    srd(a, S_KS, 98, 0x10000)
    srd(a, S_KZ, 24, 0x10000)
    srd(a, S_QV, 96, 0x800000)
    srd(a, S_VS, 26, 0x8000)
    srd(a, S_VZ, 28, 0x8000)
    deq_loads(a)
    def qloads():
        for qb in range(4):
            for ds in range(4):
                a(f"buffer_load_dwordx4 a[{Q_(qb,ds)}:{Q_(qb,ds)+3}], v{V_QOFF}, s[{S_Q}:{S_Q+3}], s{S_ROW+qb} offen offset:{64*ds}")
    srd(a, S_WS, 90, 0x10000000)
    srd(a, S_Q, 92, 0x1000000)
    srd(a, S_OUT, 30, 0x1000000)
    srd(a, S_DBG, 88, 256)
    deq_lane_v(a)
    a(f"v_lshlrev_b32 v{V_L16}, 4, v{V_T+1}")
    a("s_and_b32 s35, s34, 3")
    a("s_lshl_b32 s36, s33, 2")
    a("s_add_u32 s35, s35, s36")
    a("s_lshr_b32 s36, s34, 2")
    a("s_lshl_b32 s35, s35, 11")
    a("s_lshl_b32 s36, s36, 8")
    a("s_add_u32 s35, s35, s36")
    a("s_lshl_b32 s36, s32, 6")
    a("s_add_u32 s35, s35, s36")
    a("s_lshl_b32 s35, s35, 8")
    a("s_add_u32 s36, s35, 0x1000")
    a("s_add_u32 s37, s35, 0x2000")
    a("s_add_u32 s38, s35, 0x3000")
    a(f"s_lshl_b32 s{S_HB}, s33, 21")
    a(f"s_lshl_b32 s{S_W8K}, s32, 13")
    a(f"s_mov_b32 s{S_MASK}, 0xffff0000")
    a(f"s_mov_b32 s{S_CS}, {f32bits(math.log2(math.e) / math.sqrt(128.0)):#x}")
    a(f"s_mov_b32 s{S_CS+1}, s{S_CS}")
    a(f"s_mov_b32 s{S_FLAG}, 0")
    a(f"s_mov_b32 s{S_HELPED}, 0")
    deq_outoffs(a)
    a(f"v_lshlrev_b32 v{V_QOFF}, 8, v6")
    a(f"v_lshl_add_u32 v{V_QOFF}, v7, 4, v{V_QOFF}")
    if "lateq" not in OPT:
        qloads()
    a(f"s_add_u32 s39, s{S_HB}, s{S_W8K}")
    a(f"v_add_u32 v{V_DMA0}, s39, v{V_L16}")
    a(f"v_add_u32 v{V_DMA1}, 0x1000, v{V_DMA0}")
    a("s_lshl_b32 s39, s33, 5")
    a(f"v_add_u32 v{V_POLL}, s39, v8")
    a(f"v_subrev_u32 v{V_NEED}, s34, v8")
    a(f"v_add_u32 v{V_NEED}, -1, v{V_NEED}")
    a(f"v_and_b32 v{V_NEED}, 28, v{V_NEED}")
    a(f"s_xor_b32 s75, s{S_W8K}, 0x4000")
    a("s_lshr_b32 s75, s75, 1")
    a(f"v_add_u32 v{V_LW}, s75, v{V_L16}")
    a(f"v_mov_b32 v{V_AB}, v{V_L16}")
    for i in range(4):
        a(f"v_mov_b32 v{12+i}, 0")
    a(f"v_mov_b32 v{V_T}, 0x3f803f80")
    for i in range(4):
        a(f"v_accvgpr_write_b32 a{A_ONES+i}, v{V_T}")
    for i in range(8):
        a(f"v_mfma_f32_32x32x16_bf16 a[{16*i}:{16*i+15}], v[12:15], v[12:15], 0")
    a(f"v_mfma_f32_32x32x16_bf16 a[{L_(0)}:{L_(0)+15}], v[12:15], v[12:15], 0")
    if "tl" in OPT:
        a("s_memrealtime s[94:95]")
        a("s_waitcnt lgkmcnt(0)")
        a("v_mov_b32 v248, s94")
    deq_compute(a, "0", 0 if "lateq" in OPT else 16)
    if "tl" in OPT:
        a("s_memrealtime s[94:95]")
        a("s_waitcnt lgkmcnt(0)")
        a("v_mov_b32 v249, s94")
    if "lateq" in OPT:
        qloads()
        a("s_waitcnt vmcnt(16) lgkmcnt(0)")
    else:
        a("s_waitcnt vmcnt(0) lgkmcnt(0)")
    if "tl" in OPT:
        a("s_memrealtime s[94:95]")
        a("s_waitcnt lgkmcnt(0)")
        a("v_mov_b32 v250, s94")
    a("s_barrier")
    a("s_cmp_lg_u32 s32, 0")
    a("s_cbranch_scc1 L_pub_done")
    a(f"s_add_u32 s39, s39, s34")
    a(f"v_mov_b32 v{V_T}, 1")
    a(f"v_mov_b32 v{V_T+1}, s39")
    a("s_mov_b64 exec, 1")
    a(f"buffer_store_byte v{V_T}, v{V_T+1}, s[{S_DBG}:{S_DBG+3}], 0 offen sc1")
    a("s_mov_b64 exec, -1")
    a.label("L_pub_done")
    poll(a, "1", True, "s_waitcnt lgkmcnt(0)")
    if "tl" in OPT:
        a("s_memrealtime s[94:95]")
        a("s_waitcnt lgkmcnt(0)")
        a("v_mov_b32 v251, s94")
    a.label("L_go")
    a(f"s_lshl_b32 s{S_DOFF}, s34, 15")
    a(f"s_lshr_b32 s75, s{S_W8K}, 2")
    a(f"s_add_u32 m0, s75, {SEC_C}")
    a(f"s_sub_u32 s75, s75, s{S_W8K}")
    a(f"s_add_u32 s75, s75, {SEC_C}")
    a(f"s_add_u32 s75, s75, s{S_DOFF}")
    for i in range(2):
        a(f"buffer_load_dwordx4 v{V_DMA0}, s[{S_WS}:{S_WS+3}], s75 offen offset:{1024*i} lds")
    a(f"s_add_u32 s{S_DOFF}, s{S_DOFF}, 0x8000")
    a(f"s_and_b32 s{S_DOFF}, s{S_DOFF}, 0xfffff")
    a(f"s_add_u32 s{S_SLB}, s{S_W8K}, 0x8000")
    dma_tile(a)
    dma_tile(a)
    dma_tile(a)
    a("s_waitcnt vmcnt(26)")
    if "tl" in OPT:
        a("s_memrealtime s[74:75]")
        a("s_waitcnt lgkmcnt(0)")
    sc = Sched(a)
    for f in range(8):
        sc.read(f, V_AB, SEC_B + f * 1024)
    for k in range(64):
        sc.time += 1
        kvb, qb, ds = k >> 4, (k >> 2) & 3, k & 3
        f = 4 * (kvb & 1) + ds
        sc.need([f])
        d = S_(kvb, qb)
        c = "0" if ds == 0 else f"v[{d}:{d+3}]"
        a(f"{MF} v[{d}:{d+3}], a[{F_(f)}:{F_(f)+3}], a[{Q_(qb,ds)}:{Q_(qb,ds)+3}], {c}")
        if qb == 3 and kvb < 2:
            sc.read(f, V_AB, SEC_A + (kvb * 4 + ds) * 1024)
    a("s_nop 15")
    ms = [V_T + 2 * qb for qb in range(4)]
    for qb in range(4):
        rowmax(a, qb, ms[qb])
    xlane_max(a, ms)
    for qb in range(4):
        for r in range(4):
            a(f"v_sub_f32 v{NEGM+4*qb+r}, 0, v{ms[qb]}")
    for kvb in range(4):
        for qb in range(4):
            for r in range(4):
                s = S_(kvb, qb) + r
                a(f"v_add_f32 v{s}, v{s}, v{NEGM+4*qb}")
    for j in range(16, 64):
        a(exp_op(j, 1))
        if (j & 1) == 0 and j > 16:
            a(cvt_op(j - 1, 1))
    a("s_nop 0")
    a(cvt_op(63, 1))
    poll(a, "2", False, "s_waitcnt vmcnt(24) lgkmcnt(0)")
    for f in range(8):
        sc.read(f, V_AB, SEC_C + f * 1024)
    a("s_waitcnt lgkmcnt(0)")
    scratch = Asm()
    sc2 = Sched(scratch)
    for _ in range(3):
        gen_body(scratch, sc2, 0)
        gen_body(scratch, sc2, 1)
    state0 = (list(sc2.carry), [(f, sc2.time - t) for f, t in sc2.pending])
    sc2.a = a
    sc = sc2
    a(f"s_mov_b32 s{S_CNT}, 15")
    if "tl" in OPT:
        a("s_memrealtime s[76:77]")
        a("s_waitcnt lgkmcnt(0)")
    if "stamp" in OPT:
        a("s_memtime s[48:49]")
        a("s_memrealtime s[64:65]")
        a("s_waitcnt lgkmcnt(0)")
    a.raw(".p2align 6")
    a.label("L_loop")
    gen_body(a, sc, 0)
    gen_body(a, sc, 1)
    assert state0 == (list(sc.carry), [(f, sc.time - t) for f, t in sc.pending])
    a(f"s_sub_u32 s{S_CNT}, s{S_CNT}, 1")
    a(f"s_cmp_lg_u32 s{S_CNT}, 0")
    a("s_cbranch_scc1 L_loop")
    if "stamp" in OPT:
        a("s_memtime s[50:51]")
        a("s_memrealtime s[66:67]")
        a("s_waitcnt lgkmcnt(0)")
    if "tl" in OPT:
        a("s_memrealtime s[78:79]")
        a("s_waitcnt lgkmcnt(0)")
    gen_body(a, sc, 0)
    gen_body(a, sc, 1, last=True)
    a.label("L_epi")
    a("s_waitcnt vmcnt(0)")
    a("s_nop 15")
    a(f"s_mov_b32 s{S_TMP}, {f32bits(2.0**100):#x}")
    for qb in range(4):
        a(f"v_accvgpr_read_b32 v{V_R+qb}, a{L_(qb)}")
    a(f"v_max3_f32 v{V_T}, v{V_R}, v{V_R+1}, v{V_R+2}")
    a(f"v_max_f32 v{V_T}, v{V_T}, v{V_R+3}")
    a(f"v_add_f32 v{V_T+1}, v{V_R}, v{V_R+1}")
    a(f"v_add_f32 v{V_T+2}, v{V_R+2}, v{V_R+3}")
    a(f"v_cmp_nle_f32 s[40:41], v{V_T}, s{S_TMP}")
    a(f"v_cmp_u_f32 s[42:43], v{V_T+1}, v{V_T+2}")
    for qb in range(4):
        a(f"v_rcp_f32 v{V_R+qb}, v{V_R+qb}")
    a(f"v_mov_b32 v{V_T}, 0")
    a(f"v_mov_b32 v{V_T+1}, 0")
    for qb in range(4):
        for db in range(8):
            o = O_(qb, db)
            for r in range(0, 4, 2):
                t = 64 + ((db * 4 + r) & 7)
                a(f"v_accvgpr_read_b32 v{t}, a{o+r}")
                a(f"v_accvgpr_read_b32 v{t+1}, a{o+r+1}")
                a(f"v_mul_f32 v{t}, v{t}, v{V_R+qb}")
                a(f"v_mul_f32 v{t+1}, v{t+1}, v{V_R+qb}")
                a(f"v_fma_f32 v{V_T}, v{t}, 0, v{V_T}")
                a(f"v_fma_f32 v{V_T+1}, v{t+1}, 0, v{V_T+1}")
                a(f"v_cvt_pk_bf16_f32 v{qb*16+db*2+(r>>1)}, v{t}, v{t+1}")
    a(f"v_cmp_u_f32 vcc, v{V_T}, v{V_T+1}")
    a("s_or_b64 s[40:41], s[40:41], s[42:43]")
    a("s_or_b64 vcc, vcc, s[40:41]")
    a(f"s_cmp_lg_u32 s{S_FLAG}, 0")
    a("s_cbranch_scc1 L_store")
    if "nofb" not in OPT:
        a("s_cbranch_vccnz L_fallback")
    a.label("L_store")
    if "tl" in OPT:
        a("s_memrealtime s[80:81]")
    for qb in range(4):
        for e in range(4):
            r = qb * 16 + e * 4
            a(f"buffer_store_dwordx4 v[{r}:{r+3}], v{V_QOFF}, s[{S_OUT}:{S_OUT+3}], s{S_ROW+qb} offen offset:{e*64}")
    if "tl" in OPT:
        a("s_waitcnt vmcnt(0)")
        a("s_memrealtime s[82:83]")
        a("s_waitcnt lgkmcnt(0)")
        a("s_lshl_b32 s84, s2, 7")
        a("s_lshl_b32 s85, s32, 5")
        a("s_add_u32 s84, s84, s85")
        a("s_add_u32 s84, s84, 0x4100000")
        for i, r in enumerate((100, 74, 76, 78, 80, 82)):
            a(f"v_mov_b32 v{70+i}, s{r}")
        a("v_mov_b32 v76, v251")
        a("v_mov_b32 v77, 0")
        a("v_mov_b32 v78, 0")
        a("s_mov_b64 exec, 1")
        a(f"buffer_store_dwordx4 v[70:73], v78, s[{S_WS}:{S_WS+3}], s84 offen")
        a(f"buffer_store_dwordx4 v[74:77], v78, s[{S_WS}:{S_WS+3}], s84 offen offset:16")
        a("s_add_u32 s84, s84, 0x100000")
        a(f"buffer_store_dwordx4 v[248:251], v78, s[{S_WS}:{S_WS+3}], s84 offen")
        a(f"buffer_store_dwordx4 v[252:255], v78, s[{S_WS}:{S_WS+3}], s84 offen offset:16")
    if "stamp" in OPT:
        a("s_memtime s[52:53]")
        a("s_memrealtime s[54:55]")
        a("s_waitcnt lgkmcnt(0)")
        a("s_sub_u32 s52, s52, s44")
        a("s_sub_u32 s54, s54, s46")
        a("s_sub_u32 s50, s50, s48")
        a("s_sub_u32 s48, s48, s44")
        a("s_sub_u32 s66, s66, s64")
        a("s_sub_u32 s64, s64, s46")
        srd(a, 60, 56, 256)
        a("s_lshl_b32 s58, s2, 5")
        a("s_cmp_ge_u32 s2, 8")
        a("s_cbranch_scc1 L_done")
        a("s_cmp_lg_u32 s32, 0")
        a("s_cbranch_scc1 L_done")
        a("s_nop 4")
        a("v_mov_b32 v70, s52")
        a("v_mov_b32 v71, s54")
        a("v_mov_b32 v72, s50")
        a("v_mov_b32 v73, s48")
        a("v_mov_b32 v74, 0")
        a("s_mov_b64 exec, 1")
        a("v_mov_b32 v76, s66")
        a("v_mov_b32 v77, s64")
        a("v_mov_b32 v78, 0")
        a("v_mov_b32 v79, 0")
        a("buffer_store_dwordx4 v[70:73], v74, s[60:63], s58 offen")
        a("buffer_store_dwordx4 v[76:79], v74, s[60:63], s58 offen offset:16")
    a.label("L_done")
    a("s_endpgm")

    a.label("L_selfhelp")
    a("s_waitcnt vmcnt(0) lgkmcnt(0)")
    a("s_barrier")
    a(f"s_mov_b32 s{S_HELPED}, 1")
    a(f"s_mov_b32 s{S_TILE}, 0")
    a.label("L_sh_tile")
    a(f"v_mov_b32 v{V_LW}, {NSLOT*SLOTB}")
    deq_loads(a)
    deq_outoffs(a)
    deq_compute(a, "1")
    a("s_waitcnt vmcnt(0) lgkmcnt(0)")
    a(f"s_add_u32 s{S_TILE}, s{S_TILE}, 1")
    a(f"s_cmp_lt_u32 s{S_TILE}, 32")
    a("s_cbranch_scc1 L_sh_tile")
    a("s_barrier")
    a("buffer_inv sc1")
    a("s_waitcnt vmcnt(0)")
    a("s_barrier")
    a("s_branch L_go")

    a.label("L_fallback")
    a(f"s_mov_b32 s{S_FLAG}, 1")
    for i in range(128):
        a(f"v_accvgpr_write_b32 a{i}, 0")
    for i in range(16):
        a(f"v_accvgpr_write_b32 a{L_(0)+i}, 0")
    for qb in range(4):
        a(f"v_mov_b32 v{V_M+qb}, {f32bits(-3.0e38):#x}")
    a("s_mov_b32 s39, 0")
    a(f"s_mov_b32 s{S_CNT}, 32")
    a.label("L_fb_loop")

    def fb_load8(delta):
        a(f"s_add_u32 s{S_DOFF}, s39, {delta & 0xffffffff:#x}")
        a(f"s_and_b32 s{S_DOFF}, s{S_DOFF}, 0xfffff")
        a(f"s_add_u32 s{S_DOFF}, s{S_DOFF}, s{S_HB}")
        for q4 in range(2):
            for i in range(4):
                f = q4 * 4 + i
                a(f"buffer_load_dwordx4 a[{F_(f)}:{F_(f)+3}], v{V_L16}, s[{S_WS}:{S_WS+3}], s{S_DOFF} offen offset:{1024*i}")
            a(f"s_add_u32 s{S_DOFF}, s{S_DOFF}, 0x1000")
        a("s_waitcnt vmcnt(0)")
    for half in range(2):
        fb_load8(-8192 if half == 0 else 0)
        for kv2 in range(2):
            kvb = half * 2 + kv2
            for qb in range(4):
                d = S_(kvb, qb)
                for ds in range(4):
                    f = kv2 * 4 + ds
                    c = "0" if ds == 0 else f"v[{d}:{d+3}]"
                    a(f"{MF} v[{d}:{d+3}], a[{F_(f)}:{F_(f)+3}], a[{Q_(qb,ds)}:{Q_(qb,ds)+3}], {c}")
        a("s_nop 15")
    for qb in range(4):
        rowmax(a, qb, ms[qb], extra=V_M + qb)
    xlane_max(a, ms)
    for qb in range(4):
        m = ms[qb]
        al = m + 1
        a(f"v_sub_f32 v{al}, v{V_M+qb}, v{m}")
        a(f"v_exp_f32 v{al}, v{al}")
        a(f"v_mov_b32 v{V_M+qb}, v{m}")
        regs = [O_(qb, db) + r for db in range(8) for r in range(4)] + [L_(qb) + r for r in range(4)]
        for o in regs:
            a(f"v_accvgpr_read_b32 v{V_T+8}, a{o}")
            a(f"v_mul_f32 v{V_T+8}, v{V_T+8}, v{al}")
            a(f"v_accvgpr_write_b32 a{o}, v{V_T+8}")
    for kvb in range(4):
        for qb in range(4):
            for r in range(4):
                s = S_(kvb, qb) + r
                a(f"v_sub_f32 v{s}, v{s}, v{ms[qb]}")
    for s in range(64):
        a(f"v_exp_f32 v{s}, v{s}")
    a("s_nop 0")
    for kvb in range(4):
        for qb in range(4):
            for r in range(0, 4, 2):
                s = S_(kvb, qb) + r
                p = P_(0, kvb >> 1, qb) + (kvb & 1) * 2 + (r >> 1)
                a(f"v_cvt_pk_bf16_f32 v{p}, v{s}, v{s+1}")
    a("s_nop 1")
    for qb in range(4):
        for s in range(2):
            p = P_(0, s, qb)
            a(f"{MF} a[{L_(qb)}:{L_(qb)+3}], a[{A_ONES}:{A_ONES+3}], v[{p}:{p+3}], a[{L_(qb)}:{L_(qb)+3}]")
    for half in range(2):
        fb_load8(SLOTB + SEC_B + half * 8192)
        for f in range(8):
            fv = half * 8 + f
            db, s = fv >> 1, fv & 1
            for qb in range(4):
                p = P_(0, s, qb)
                o = O_(qb, db)
                a(f"{MF} a[{o}:{o+3}], a[{F_(f)}:{F_(f)+3}], v[{p}:{p+3}], a[{o}:{o+3}]")
        a("s_nop 15")
    a(f"s_add_u32 s39, s39, {SLOTB}")
    a(f"s_sub_u32 s{S_CNT}, s{S_CNT}, 1")
    a(f"s_cmp_lg_u32 s{S_CNT}, 0")
    a("s_cbranch_scc1 L_fb_loop")
    a("s_branch L_epi")


def descriptor(a, name, vgpr, sgpr, accum):
    a.raw(f".amdhsa_kernel {name}")
    a.raw(f"  .amdhsa_next_free_vgpr {vgpr}")
    a.raw(f"  .amdhsa_next_free_sgpr {sgpr}")
    a.raw(f"  .amdhsa_accum_offset {accum}")
    a.raw("  .amdhsa_group_segment_fixed_size 0")
    a.raw("  .amdhsa_kernarg_size 80")
    a.raw("  .amdhsa_user_sgpr_count 2")
    a.raw("  .amdhsa_user_sgpr_kernarg_segment_ptr 1")
    a.raw("  .amdhsa_system_sgpr_workgroup_id_x 1")
    a.raw(".end_amdhsa_kernel")


def main():
    out = sys.argv[1] if len(sys.argv) > 1 else OUT
    a = Asm()
    a.raw(HEADER.rstrip("\n"))
    if "list" in OPT:
        a.raw(f"; @launch kernel={NAME}_kernel grid=(256,1,1) block=(256,1,1) lds={NSLOT*SLOTB+8192}")
    else:
        a.raw(f"; @launch grid=(256,1,1) block=(256,1,1) lds={NSLOT*SLOTB+8192}")
    a.raw('.amdgcn_target "amdgcn-amd-amdhsa--gfx950"')
    a.raw(".text")
    gen_main(a)
    a.raw('.section .rodata,"a"')
    a.raw(".p2align 6")
    descriptor(a, NAME + "_kernel", 512, 102, 256)
    open(out, "w").write(a.text())


if __name__ == "__main__":
    main()
```

```python
import math
import os
import struct
import sys

OPT = set(os.environ.get("GENOPT", "").split(",")) | {"noinv", "nt", "ntst", "dmasc1"}
OPT -= set(os.environ.get("GENNOT", "").split(","))
NAME = "standalone__kv_cache_quant_int4_int2_kv_with_per_channel_or_per_token_scales__prompt"
OUT = f"cdna_kernels/{NAME}.s"

HEADER = """; Kernarg layout for this problem (80 bytes, ptrs only, base s[0:1]):
;   offset   0: d_in[0] q  shape=(1, 32, 2048, 128) dtype=bfloat16 strides=(16777216, 524288, 256, 2) contiguous=True
;   offset   8: d_in[1] qk  shape=(1, 8, 2048, 128) dtype=int32 strides=(8388608, 1048576, 512, 4) contiguous=True
;   offset  16: d_in[2] qv  shape=(1, 8, 2048, 128) dtype=int32 strides=(8388608, 1048576, 512, 4) contiguous=True
;   offset  24: d_in[3] k_scales  shape=(1, 8, 32, 128) dtype=bfloat16 strides=(65536, 8192, 256, 2) contiguous=True
;   offset  32: d_in[4] k_zeros  shape=(1, 8, 32, 128) dtype=bfloat16 strides=(65536, 8192, 256, 2) contiguous=True
;   offset  40: d_in[5] v_scales  shape=(1, 8, 2048, 1) dtype=bfloat16 strides=(32768, 4096, 2, 2) contiguous=True
;   offset  48: d_in[6] v_zeros  shape=(1, 8, 2048, 1) dtype=bfloat16 strides=(32768, 4096, 2, 2) contiguous=True
;
; Phase 1: it dequantises its own 64-token K/V tile (same bf16 rounding steps as the reference; the
;   softmax scale * log2(e) is folded into K) into d_ws as ready-to-use MFMA fragments (write-through
;   need (agent-scope loads); if a producer never shows up they dequantise the whole head themselves.
; Phase 2: flash attention for (q head, 256 query rows), 4 waves x 64 rows, kv tiles visited
;   through the MFMA C operand), P = exp2(S^T), O^T += V^T P^T, row sums via a ones-operand MFMA.
;   If a later tile makes that reference max unsafe (row sum too large / non finite output) the wave
"""


def f32bits(x):
    return struct.unpack("<I", struct.pack("<f", x))[0]


class Asm:
    def __init__(self):
        self.lines = []

    def __call__(self, s):
        if "nt" in OPT and s.startswith("buffer_load_dwordx4") and " lds" not in s and ("s[44:47]" in s or "s[48:51]" in s or "s[8:11]" in s):
            s += " nt"
        if "dmasc1" in OPT and s.startswith("buffer_load_dwordx4") and "s[4:7]" in s:
            s = s.replace(" lds", " sc1 lds") if " lds" in s else s + " sc1"
        if "ntst" in OPT and s.startswith("buffer_store_dwordx4") and "s[12:15]" in s:
            s += " nt"
        self.lines.append("    " + s)

    def label(self, s):
        self.lines.append(s + ":")

    def raw(self, s):
        self.lines.append(s)

    def text(self):
        return "\n".join(self.lines) + "\n"


def srd(a, d, base, nbytes):
    a(f"s_mov_b32 s{d}, s{base}")
    a(f"s_and_b32 s{d+1}, s{base+1}, 0xffff")
    a(f"s_mov_b32 s{d+2}, {nbytes:#x}")
    a(f"s_mov_b32 s{d+3}, 0x00020000")


S_QK, S_QV, S_KS, S_KZ, S_VS, S_VZ, S_DBG = 44, 48, 52, 56, 60, 64, 68
S_TILE, S_TASK = 72, 73
S_MASK, S_CS = 84, 86
S_I8, S_I4, S_MODE, S_PCNT, S_HELPED = 88, 89, 90, 91, 92
KD, KSC, KZR = 16, 48, 64
WW, ZZ, SS, TT, OO = 80, 88, 96, 104, 108
VD, VRAW, VUN = 128, 192, 200
V_KIN, V_KSO, V_VIN, V_VSO, V_VOUT, V_LW, V_NEED, V_VST, V_VRD = 240, 241, 242, 243, 244, 245, 246, 247, 191


def deq_lane_k(a, lane):
    a(f"v_and_b32 v6, 15, v{lane}")
    a(f"v_lshrrev_b32 v7, 4, v{lane}")
    a(f"v_lshlrev_b32 v{V_KIN}, 9, v6")
    a(f"v_lshl_add_u32 v{V_KIN}, v7, 5, v{V_KIN}")
    a(f"v_lshlrev_b32 v{V_KSO}, 4, v7")
    a(f"v_and_b32 v8, 31, v{lane}")
    a(f"v_lshrrev_b32 v9, 5, v{lane}")
    a(f"v_lshlrev_b32 v{V_VIN}, 11, v9")
    a(f"v_lshl_add_u32 v{V_VIN}, v8, 4, v{V_VIN}")
    a(f"v_lshlrev_b32 v{V_VSO}, 3, v9")


def deq_lane_v(a):
    a("v_lshrrev_b32 v10, 3, v8")
    a(f"v_lshlrev_b32 v{V_VOUT}, 12, v10")
    a("v_and_b32 v10, 1, v8")
    a(f"v_lshl_add_u32 v{V_VOUT}, v10, 11, v{V_VOUT}")
    a("v_bfe_u32 v10, v8, 1, 2")
    a(f"v_lshl_add_u32 v{V_VOUT}, v10, 6, v{V_VOUT}")
    a(f"v_lshl_add_u32 v{V_VOUT}, v9, 8, v{V_VOUT}")
    a(f"v_lshlrev_b32 v{V_VST}, 11, v9")
    a(f"v_lshl_add_u32 v{V_VST}, v8, 4, v{V_VST}")
    a("s_lshl_b32 s75, s78, 10")
    a("s_lshl_b32 s76, s79, 9")
    a("s_add_u32 s75, s75, s76")
    a(f"s_add_u32 s75, s75, {32768 + 8192}")
    a(f"v_add_u32 v{V_VOUT}, s75, v{V_VOUT}")
    a(f"v_add_u32 v{V_VRD}, s75, v{V_VST}")


def deq_loads(a):
    a("s_lshl_b32 s75, s33, 5")
    a(f"s_add_u32 s75, s75, s{S_TILE}")
    a("s_lshl_b32 s76, s75, 8")
    a("s_lshl_b32 s77, s75, 6")
    a(f"s_lshl_b32 s74, s{S_TASK}, 4")
    a("s_add_u32 s74, s74, s77")
    a("s_lshl_b32 s74, s74, 9")
    for i in range(4):
        a(f"buffer_load_dwordx4 v[{KD+8*i}:{KD+8*i+3}], v{V_KIN}, s[{S_QK}:{S_QK+3}], s74 offen offset:{128*i}")
        a(f"buffer_load_dwordx4 v[{KD+8*i+4}:{KD+8*i+7}], v{V_KIN}, s[{S_QK}:{S_QK+3}], s74 offen offset:{128*i+16}")
    for i in range(4):
        a(f"buffer_load_dwordx4 v[{KSC+4*i}:{KSC+4*i+3}], v{V_KSO}, s[{S_KS}:{S_KS+3}], s76 offen offset:{64*i}")
        a(f"buffer_load_dwordx4 v[{KZR+4*i}:{KZR+4*i+3}], v{V_KSO}, s[{S_KZ}:{S_KZ+3}], s76 offen offset:{64*i}")
    a(f"s_lshr_b32 s78, s{S_TASK}, 1")
    a(f"s_and_b32 s79, s{S_TASK}, 1")
    a("s_lshl_b32 s75, s78, 5")
    a("s_add_u32 s77, s77, s75")
    a("s_lshl_b32 s75, s79, 3")
    a("s_add_u32 s77, s77, s75")
    a("s_lshl_b32 s80, s77, 1")
    a("s_lshl_b32 s77, s77, 9")
    a("s_add_u32 s81, s77, 8192")
    for j in range(8):
        so = "s77" if j < 4 else "s81"
        a(f"buffer_load_dwordx4 v[{VD+4*j}:{VD+4*j+3}], v{V_VIN}, s[{S_QV}:{S_QV+3}], {so} offen offset:{512*(j&3)}")
    a(f"buffer_load_dwordx2 v[{VRAW}:{VRAW+1}], v{V_VSO}, s[{S_VS}:{S_VS+3}], s80 offen")
    a(f"buffer_load_dwordx2 v[{VRAW+2}:{VRAW+3}], v{V_VSO}, s[{S_VS}:{S_VS+3}], s80 offen offset:32")
    a(f"buffer_load_dwordx2 v[{VRAW+4}:{VRAW+5}], v{V_VSO}, s[{S_VZ}:{S_VZ+3}], s80 offen")
    a(f"buffer_load_dwordx2 v[{VRAW+6}:{VRAW+7}], v{V_VSO}, s[{S_VZ}:{S_VZ+3}], s80 offen offset:32")


def deq_outoffs(a):
    a(f"s_lshl_b32 s82, s{S_TILE}, 15")
    a("s_add_u32 s83, s82, 0x8000")
    a("s_and_b32 s83, s83, 0xfffff")
    a("s_add_u32 s83, s83, 8192")
    a("s_lshl_b32 s75, s78, 10")
    a("s_add_u32 s83, s83, s75")
    a("s_lshl_b32 s75, s79, 9")
    a("s_add_u32 s83, s83, s75")
    a(f"s_add_u32 s83, s83, s{S_HB}")
    a(f"s_lshl_b32 s75, s{S_TASK}, 12")
    a("s_add_u32 s82, s82, s75")
    a("s_sub_u32 s82, s82, 8192")
    a("s_and_b32 s82, s82, 0xfffff")
    a(f"s_add_u32 s82, s82, s{S_HB}")


def rnd_unpack(a):
    for p in range(4):
        a(f"v_cvt_pk_bf16_f32 v{TT+p}, v{WW+2*p}, v{WW+2*p+1}")
    for p in range(4):
        a(f"v_lshlrev_b32 v{WW+2*p}, 16, v{TT+p}")
        a(f"v_and_b32 v{WW+2*p+1}, s{S_MASK}, v{TT+p}")


def deq_compute(a, tag, extra=0):
    a(f"s_waitcnt vmcnt({12+extra})")
    a(f"s_mov_b32 s{S_I8}, 0")
    a(f"s_mov_b32 s{S_I4}, 0")
    a.label(f"L_dk{tag}")
    a(f"s_set_gpr_idx_on s{S_I8}, gpr_idx(SRC0)")
    a("s_nop 1")
    for k in range(8):
        a(f"v_cvt_f32_i32 v{WW+k}, v{KD+k}")
    a(f"s_set_gpr_idx_idx s{S_I4}")
    a("s_set_gpr_idx_mode gpr_idx(SRC1)")
    a("s_nop 1")
    for p in range(4):
        a(f"v_lshlrev_b32 v{ZZ+2*p}, 16, v{KZR+p}")
        a(f"v_and_b32 v{ZZ+2*p+1}, s{S_MASK}, v{KZR+p}")
        a(f"v_lshlrev_b32 v{SS+2*p}, 16, v{KSC+p}")
        a(f"v_and_b32 v{SS+2*p+1}, s{S_MASK}, v{KSC+p}")
    a("s_set_gpr_idx_off")
    a("s_nop 1")
    for p in range(4):
        a(f"v_pk_add_f32 v[{WW+2*p}:{WW+2*p+1}], v[{WW+2*p}:{WW+2*p+1}], v[{ZZ+2*p}:{ZZ+2*p+1}] neg_lo:[0,1] neg_hi:[0,1]")
    rnd_unpack(a)
    for p in range(4):
        a(f"v_pk_mul_f32 v[{WW+2*p}:{WW+2*p+1}], v[{WW+2*p}:{WW+2*p+1}], v[{SS+2*p}:{SS+2*p+1}]")
    rnd_unpack(a)
    for p in range(4):
        a(f"v_pk_mul_f32 v[{WW+2*p}:{WW+2*p+1}], v[{WW+2*p}:{WW+2*p+1}], s[{S_CS}:{S_CS+1}]")
    for p in range(4):
        a(f"v_cvt_pk_bf16_f32 v{OO+p}, v{WW+2*p}, v{WW+2*p+1}")
    a(f"buffer_store_dwordx4 v[{OO}:{OO+3}], v{V_L16}, s[{S_WS}:{S_WS+3}], s82 offen sc1")
    a(f"ds_write_b128 v{V_LW}, v[{OO}:{OO+3}]")
    a(f"v_add_u32 v{V_LW}, 0x400, v{V_LW}")
    a("s_add_u32 s82, s82, 0x400")
    a(f"s_add_u32 s{S_I8}, s{S_I8}, 8")
    a(f"s_add_u32 s{S_I4}, s{S_I4}, 4")
    a(f"s_cmp_lt_u32 s{S_I4}, 16")
    a(f"s_cbranch_scc1 L_dk{tag}")
    a(f"s_waitcnt vmcnt({4+extra})")
    for p in range(4):
        a(f"v_lshlrev_b32 v{SS+2*p}, 16, v{VRAW+p}")
        a(f"v_and_b32 v{SS+2*p+1}, s{S_MASK}, v{VRAW+p}")
        a(f"v_lshlrev_b32 v{ZZ+2*p}, 16, v{VRAW+4+p}")
        a(f"v_and_b32 v{ZZ+2*p+1}, s{S_MASK}, v{VRAW+4+p}")
    a(f"s_mov_b32 s{S_I4}, 0")
    a.label(f"L_dv{tag}")
    a(f"s_set_gpr_idx_on s{S_I4}, gpr_idx(SRC0)")
    a("s_nop 1")
    for j in range(8):
        a(f"v_cvt_f32_i32 v{WW+j}, v{VD+4*j}")
    a("s_set_gpr_idx_off")
    a("s_nop 1")
    for p in range(4):
        a(f"v_pk_add_f32 v[{WW+2*p}:{WW+2*p+1}], v[{WW+2*p}:{WW+2*p+1}], v[{ZZ+2*p}:{ZZ+2*p+1}] neg_lo:[0,1] neg_hi:[0,1]")
    rnd_unpack(a)
    for p in range(4):
        a(f"v_pk_mul_f32 v[{WW+2*p}:{WW+2*p+1}], v[{WW+2*p}:{WW+2*p+1}], v[{SS+2*p}:{SS+2*p+1}]")
    for p in range(4):
        a(f"v_cvt_pk_bf16_f32 v{OO+p}, v{WW+2*p}, v{WW+2*p+1}")
    a(f"ds_write_b128 v{V_VOUT}, v[{OO}:{OO+3}]")
    a(f"v_add_u32 v{V_VOUT}, 16, v{V_VOUT}")
    a(f"s_add_u32 s{S_I4}, s{S_I4}, 1")
    a(f"s_cmp_lt_u32 s{S_I4}, 4")
    a(f"s_cbranch_scc1 L_dv{tag}")
    a(f"v_add_u32 v{V_VOUT}, -64, v{V_VOUT}")
    for k in range(4):
        a(f"ds_read_b128 v[{KD+4*k}:{KD+4*k+3}], v{V_VRD} offset:{4096*k}")
    for k in range(4):
        a(f"s_waitcnt lgkmcnt({3-k})")
        a(f"buffer_store_dwordx4 v[{KD+4*k}:{KD+4*k+3}], v{V_VST}, s[{S_WS}:{S_WS+3}], s83 offen sc1")
        if k < 3:
            a("s_add_u32 s83, s83, 0x1000")


def poll(a, tag, masked, pre_barrier):
    a(f"v_mov_b32 v{V_T+2}, {NSLOT*SLOTB + 4096 + 64 * int(tag)}")
    a("s_cmp_lg_u32 s32, 0")
    a(f"s_cbranch_scc1 L_pw{tag}")
    a(f"s_mov_b32 s{S_MODE}, 1")
    a(f"s_cmp_lg_u32 s{S_HELPED}, 0")
    a(f"s_cbranch_scc1 L_pok{tag}")
    a(f"s_mov_b32 s{S_PCNT}, 0")
    a.label(f"L_poll{tag}")
    a(f"buffer_load_ubyte v{V_T}, v{V_POLL}, s[{S_DBG}:{S_DBG+3}], 0 offen sc1")
    a(f"s_waitcnt vmcnt(0)")
    if masked:
        a(f"v_or_b32 v{V_T}, v{V_T}, v{V_NEED}")
    a(f"v_cmp_eq_u32 vcc, 0, v{V_T}")
    a(f"s_add_u32 s{S_PCNT}, s{S_PCNT}, 1")
    a("s_nop 3")
    a(f"s_cbranch_vccz L_pdone{tag}")
    a(f"s_sleep {SLEEP}")
    a(f"s_cmp_lt_u32 s{S_PCNT}, {0 if ('selfhelp' + tag) in OPT else 6000}")
    a(f"s_cbranch_scc1 L_poll{tag}")
    a(f"s_mov_b32 s{S_MODE}, 2")
    a.label(f"L_pdone{tag}")
    if "noinv" not in OPT:
        a("buffer_inv sc1")
        a("s_waitcnt vmcnt(0)")
    a.label(f"L_pok{tag}")
    a(f"v_mov_b32 v{V_T}, s{S_MODE}")
    a(f"ds_write_b32 v{V_T+2}, v{V_T}")
    a.label(f"L_pw{tag}")
    a(pre_barrier)
    a("s_barrier")
    a(f"ds_read_b32 v{V_T}, v{V_T+2}")
    a("s_waitcnt lgkmcnt(0)")
    a(f"v_readfirstlane_b32 s{S_MODE}, v{V_T}")
    a("s_nop 3")
    a(f"s_cmp_eq_u32 s{S_MODE}, 2")
    a("s_cbranch_scc1 L_selfhelp")


SLEEP = int(os.environ.get("SLEEP", "4"))


def O_(qb, db):
    return (qb * 8 + db) * 4


def Q_(qb, ds):
    return 128 + (qb * 4 + ds) * 4


def F_(i):
    return 192 + 4 * i


def L_(qb):
    return 224 + 4 * qb


A_ONES = 240


def S_(kvb, qb):
    return (kvb * 4 + qb) * 4


NEGM = 64
PB = 96


def P_(par, s, qb):
    return PB + par * 32 + (s * 4 + qb) * 4


V_L16 = 164
V_AB = 165
V_DMA0 = 168
V_DMA1 = 169
V_T = 170
V_QOFF = 180
V_M = 182
V_R = 186
V_POLL = 190

S_WS, S_Q, S_OUT = 4, 8, 12
S_CNT = 16
S_DOFF = 17
S_SLB = 19
S_TMP = 20
S_HB = 22
S_W8K = 23
S_FLAG = 24
S_ROW = 35

NSLOT = 4
SLOTB = 32768
MF = "v_mfma_f32_16x16x32_bf16"
SEC_A, SEC_B, SEC_C = 0, 8192, 24576


class Sched:
    def __init__(self, a, lead=6):
        self.a = a
        self.pending = []
        self.time = 0
        self.lead = lead
        self.carry = [-1]

    def read(self, frag, addr_v, off):
        if "nord" not in OPT:
            self.a(f"ds_read_b128 a[{F_(frag)}:{F_(frag)+3}], v{addr_v} offset:{off}")
        self.pending.append((frag, self.time))

    def need(self, frags, extra=""):
        idx = None
        for i, (f, t) in enumerate(self.pending):
            if f in frags:
                idx = i
        if idx is None:
            return False
        while idx + 1 < len(self.pending) and self.time - self.pending[idx + 1][1] >= self.lead:
            idx += 1
        n = len(self.pending) - 1 - idx
        self.a(f"s_waitcnt lgkmcnt({n})")
        self.pending = self.pending[idx + 1:]
        return True


def elem(j, par_cur):
    if j < 16:
        e, par = 48 + j, par_cur
    else:
        e, par = j - 16, par_cur ^ 1
    B, r = e >> 2, e & 3
    kvb, qb = B >> 2, B & 3
    return S_(kvb, qb) + r, P_(par, kvb >> 1, qb) + (kvb & 1) * 2 + (r >> 1)


def exp_op(j, par):
    s, _ = elem(j, par)
    return f"v_exp_f32 v{s}, v{s}"


def cvt_op(j, par):
    if j < 0:
        j, par = j + 64, par ^ 1
    s, p = elem(j, par)
    return f"v_cvt_pk_bf16_f32 v{p}, v{s-1}, v{s}"


def dma_op(i):
    v = V_DMA0 if i < 4 else V_DMA1
    return f"buffer_load_dwordx4 v{v}, s[{S_WS}:{S_WS+3}], s{S_DOFF} offen offset:{1024*(i&3)} lds"


def dma_tile(a):
    for i in range(8):
        if i == 0:
            a(f"s_mov_b32 m0, s{S_SLB}")
            a("s_nop 0")
        if i == 4:
            a(f"s_add_u32 m0, s{S_SLB}, 0x1000")
            a("s_nop 0")
        a(dma_op(i))
    a(f"s_add_u32 s{S_DOFF}, s{S_DOFF}, 0x8000")
    a(f"s_and_b32 s{S_DOFF}, s{S_DOFF}, 0xfffff")
    a(f"s_add_u32 s{S_SLB}, s{S_SLB}, 0x8000")
    a(f"s_and_b32 s{S_SLB}, s{S_SLB}, 0x1ffff")


NS = 136
PV0 = 72
BAR = 11
DMA_SLOTS = [21, 37, 53, 69, 85, 101, 117, 131]
FREE_EVEN = {10, 46, 90, 134}
CVQ_MAX = 5


def mfma_info(k):
    if k < 64:
        kvb, qb, ds = k >> 4, (k >> 2) & 3, k & 3
        return ("qk", (kvb, qb, ds), 4 * (kvb & 1) + ds)
    if k < PV0:
        return ("sum", ((k - 64) >> 1, (k - 64) & 1), None)
    i = k - PV0
    db, qb, s = i >> 3, (i >> 1) & 3, i & 1
    return ("pv", (db, qb, s), (2 * db + s) & 7)


def gen_body(a, sc, par, last=False, dma=True):
    ubase = ((par ^ 1)) * SLOTB
    exq = list(range(16 if last else 64))
    cvq = list(sc.carry)
    rdq = []
    misc = []
    if not last:
        misc.append((13, [f"s_mov_b32 m0, s{S_SLB}"]))
        misc.append((70, [f"s_add_u32 m0, s{S_SLB}, 0x1000"]))
        misc.append((132, [f"s_add_u32 s{S_DOFF}, s{S_DOFF}, 0x8000"]))
        misc.append((132, [f"s_and_b32 s{S_DOFF}, s{S_DOFF}, 0xfffff"]))
        misc.append((132, [f"s_add_u32 s{S_SLB}, s{S_SLB}, 0x8000"]))
        misc.append((132, [f"s_and_b32 s{S_SLB}, s{S_SLB}, 0x1ffff"]))
    dmai = 0
    pend_cv = []
    for k in range(NS):
        sc.time += 1
        kind, prm, f = mfma_info(k)
        units = 2
        if f is not None and not (last and kind == "qk"):
            assert all(r[0] != f for r in rdq), (k, f, rdq)
        if kind == "qk":
            kvb, qb, ds = prm
            if not last:
                if sc.need([f]):
                    pass
                d = S_(kvb, qb)
                c = f"v[{NEGM+4*qb}:{NEGM+4*qb+3}]" if ds == 0 else f"v[{d}:{d+3}]"
                a(f"{MF} v[{d}:{d+3}], a[{F_(f)}:{F_(f)+3}], a[{Q_(qb,ds)}:{Q_(qb,ds)+3}], {c}")
            if qb == 3:
                if kvb < 2:
                    if not last:
                        rdq.append((f, V_AB, ubase + SEC_A + (kvb * 4 + ds) * 1024))
                else:
                    rdq.append((f, V_AB, ubase + SEC_B + f * 1024))
        elif kind == "sum":
            qb, s = prm
            p = P_(par, s, qb)
            a(f"{MF} a[{L_(qb)}:{L_(qb)+3}], a[{A_ONES}:{A_ONES+3}], v[{p}:{p+3}], a[{L_(qb)}:{L_(qb)+3}]")
        else:
            db, qb, s = prm
            fv = 2 * db + s
            sc.need([f])
            p = P_(par, s, qb)
            o = O_(qb, db)
            a(f"{MF} a[{o}:{o+3}], a[{F_(f)}:{F_(f)+3}], v[{p}:{p+3}], a[{o}:{o+3}]")
            if qb == 3:
                if fv < 8:
                    rdq.append((f, V_AB, ubase + SEC_B + (fv + 8) * 1024))
                elif not last:
                    rdq.append((f, V_AB, ubase + SEC_C + (fv - 8) * 1024))
        cvq += pend_cv
        pend_cv = []
        if k == BAR:
            if last:
                a("s_waitcnt vmcnt(0) lgkmcnt(0)")
            else:
                a("s_waitcnt vmcnt(16) lgkmcnt(0)")
            sc.pending = []
            if "nobar" not in OPT:
                a("s_barrier")
            continue
        if k in DMA_SLOTS and not last:
            if "nodma" not in OPT:
                a(dma_op(dmai))
            dmai += 1
            continue
        if (k & 1) == 0 and k not in FREE_EVEN:
            if exq:
                j = exq.pop(0)
                if "nosm" not in OPT and "noexp" not in OPT:
                    a(exp_op(j, par))
                if j & 1:
                    pend_cv.append(j)
                continue
        nxt = []
        for kk in (k + 1, k + 2):
            if kk < NS:
                kd, _, ff = mfma_info(kk)
                if ff is not None and not (last and kd == "qk"):
                    nxt.append(ff)
        light = 1
        if sc.need(nxt):
            light -= 1
        did_read = False
        if rdq and k > BAR:
            sc.read(*rdq.pop(0))
            did_read = True
        if did_read and not (len(cvq) >= CVQ_MAX and light > 0):
            pass
        elif cvq:
            if did_read:
                light -= 1
            j = cvq.pop(0)
            if last and k < 64:
                a("s_nop 0")
            if "nosm" not in OPT and "nocvt" not in OPT:
                a(cvt_op(j, par))
        else:
            light += 1
        while light > 0 and misc and misc[0][0] <= k:
            for t in misc.pop(0)[1]:
                a(t)
            light -= 1
    cvq += pend_cv
    if last:
        assert not cvq
    assert all(j >= 40 for j in cvq), cvq
    sc.carry = [j - 64 for j in cvq]
    for r in rdq:
        sc.read(*r)
    for m in misc:
        for t in m[1]:
            a(t)
    assert not exq
    if par == 0 and not last:
        a(f"v_xor_b32 v{V_AB}, 0x10000, v{V_AB}")


def rowmax(a, qb, m, extra=None):
    regs = [S_(kvb, qb) + r for kvb in range(4) for r in range(4)]
    if extra is None:
        a(f"v_max3_f32 v{m}, v{regs[0]}, v{regs[1]}, v{regs[2]}")
        for i in range(3, 15, 2):
            a(f"v_max3_f32 v{m}, v{m}, v{regs[i]}, v{regs[i+1]}")
        a(f"v_max_f32 v{m}, v{m}, v{regs[15]}")
    else:
        a(f"v_max3_f32 v{m}, v{regs[0]}, v{regs[1]}, v{extra}")
        for i in range(2, 16, 2):
            a(f"v_max3_f32 v{m}, v{m}, v{regs[i]}, v{regs[i+1]}")


def xlane_max(a, ms):
    for sw in ("v_permlane16_swap_b32", "v_permlane32_swap_b32"):
        for m in ms:
            a(f"v_mov_b32 v{m+1}, v{m}")
        a("s_nop 1")
        for m in ms:
            a(f"{sw} v{m}, v{m+1}")
        a("s_nop 1")
        for m in ms:
            a(f"v_max_f32 v{m}, v{m}, v{m+1}")


def gen_main(a):
    K = NAME + "_kernel"
    a.raw(".p2align 8")
    a.raw(f".globl {K}")
    a.raw(f".type {K},@function")
    a.label(K)
    a("s_cmp_ge_u32 s2, 256")
    a("s_cbranch_scc1 L_done")
    a("s_load_dwordx4 s[92:95], s[0:1], 0")
    a("s_load_dwordx4 s[96:99], s[0:1], 16")
    a("s_load_dwordx4 s[24:27], s[0:1], 32")
    a("s_load_dwordx4 s[28:31], s[0:1], 48")
    a("s_load_dwordx4 s[88:91], s[0:1], 64")
    if "tl" in OPT:
        a("s_memrealtime s[100:101]")
    a(f"v_lshrrev_b32 v{V_T}, 6, v0")
    a(f"v_and_b32 v{V_T+1}, 63, v0")
    a(f"v_readfirstlane_b32 s32, v{V_T}")
    if "scramble" in OPT:
        a("s_lshr_b32 s33, s2, 5")
        a("s_and_b32 s34, s2, 31")
    else:
        a("s_and_b32 s33, s2, 7")
        a("s_lshr_b32 s34, s2, 3")
    a(f"s_mov_b32 s{S_TILE}, s34")
    a(f"s_mov_b32 s{S_TASK}, s32")
    deq_lane_k(a, V_T + 1)
    a("s_waitcnt lgkmcnt(0)")
    srd(a, S_QK, 94, 0x800000)
    srd(a, S_KS, 98, 0x10000)
    srd(a, S_KZ, 24, 0x10000)
    srd(a, S_QV, 96, 0x800000)
    srd(a, S_VS, 26, 0x8000)
    srd(a, S_VZ, 28, 0x8000)
    deq_loads(a)
    def qloads():
        for qb in range(4):
            for ds in range(4):
                a(f"buffer_load_dwordx4 a[{Q_(qb,ds)}:{Q_(qb,ds)+3}], v{V_QOFF}, s[{S_Q}:{S_Q+3}], s{S_ROW+qb} offen offset:{64*ds}")
    srd(a, S_WS, 90, 0x10000000)
    srd(a, S_Q, 92, 0x1000000)
    srd(a, S_OUT, 30, 0x1000000)
    srd(a, S_DBG, 88, 256)
    deq_lane_v(a)
    a(f"v_lshlrev_b32 v{V_L16}, 4, v{V_T+1}")
    a("s_and_b32 s35, s34, 3")
    a("s_lshl_b32 s36, s33, 2")
    a("s_add_u32 s35, s35, s36")
    a("s_lshr_b32 s36, s34, 2")
    a("s_lshl_b32 s35, s35, 11")
    a("s_lshl_b32 s36, s36, 8")
    a("s_add_u32 s35, s35, s36")
    a("s_lshl_b32 s36, s32, 6")
    a("s_add_u32 s35, s35, s36")
    a("s_lshl_b32 s35, s35, 8")
    a("s_add_u32 s36, s35, 0x1000")
    a("s_add_u32 s37, s35, 0x2000")
    a("s_add_u32 s38, s35, 0x3000")
    a(f"s_lshl_b32 s{S_HB}, s33, 21")
    a(f"s_lshl_b32 s{S_W8K}, s32, 13")
    a(f"s_mov_b32 s{S_MASK}, 0xffff0000")
    a(f"s_mov_b32 s{S_CS}, {f32bits(math.log2(math.e) / math.sqrt(128.0)):#x}")
    a(f"s_mov_b32 s{S_CS+1}, s{S_CS}")
    a(f"s_mov_b32 s{S_FLAG}, 0")
    a(f"s_mov_b32 s{S_HELPED}, 0")
    deq_outoffs(a)
    a(f"v_lshlrev_b32 v{V_QOFF}, 8, v6")
    a(f"v_lshl_add_u32 v{V_QOFF}, v7, 4, v{V_QOFF}")
    if "lateq" not in OPT:
        qloads()
    a(f"s_add_u32 s39, s{S_HB}, s{S_W8K}")
    a(f"v_add_u32 v{V_DMA0}, s39, v{V_L16}")
    a(f"v_add_u32 v{V_DMA1}, 0x1000, v{V_DMA0}")
    a("s_lshl_b32 s39, s33, 5")
    a(f"v_add_u32 v{V_POLL}, s39, v8")
    a(f"v_subrev_u32 v{V_NEED}, s34, v8")
    a(f"v_add_u32 v{V_NEED}, -1, v{V_NEED}")
    a(f"v_and_b32 v{V_NEED}, 28, v{V_NEED}")
    a(f"s_xor_b32 s75, s{S_W8K}, 0x4000")
    a("s_lshr_b32 s75, s75, 1")
    a(f"v_add_u32 v{V_LW}, s75, v{V_L16}")
    a(f"v_mov_b32 v{V_AB}, v{V_L16}")
    for i in range(4):
        a(f"v_mov_b32 v{12+i}, 0")
    a(f"v_mov_b32 v{V_T}, 0x3f803f80")
    for i in range(4):
        a(f"v_accvgpr_write_b32 a{A_ONES+i}, v{V_T}")
    for i in range(8):
        a(f"v_mfma_f32_32x32x16_bf16 a[{16*i}:{16*i+15}], v[12:15], v[12:15], 0")
    a(f"v_mfma_f32_32x32x16_bf16 a[{L_(0)}:{L_(0)+15}], v[12:15], v[12:15], 0")
    if "tl" in OPT:
        a("s_memrealtime s[94:95]")
        a("s_waitcnt lgkmcnt(0)")
        a("v_mov_b32 v248, s94")
    deq_compute(a, "0", 0 if "lateq" in OPT else 16)
    if "tl" in OPT:
        a("s_memrealtime s[94:95]")
        a("s_waitcnt lgkmcnt(0)")
        a("v_mov_b32 v249, s94")
    if "lateq" in OPT:
        qloads()
        a("s_waitcnt vmcnt(16) lgkmcnt(0)")
    else:
        a("s_waitcnt vmcnt(0) lgkmcnt(0)")
    if "tl" in OPT:
        a("s_memrealtime s[94:95]")
        a("s_waitcnt lgkmcnt(0)")
        a("v_mov_b32 v250, s94")
    a("s_barrier")
    a("s_cmp_lg_u32 s32, 0")
    a("s_cbranch_scc1 L_pub_done")
    a(f"s_add_u32 s39, s39, s34")
    a(f"v_mov_b32 v{V_T}, 1")
    a(f"v_mov_b32 v{V_T+1}, s39")
    a("s_mov_b64 exec, 1")
    a(f"buffer_store_byte v{V_T}, v{V_T+1}, s[{S_DBG}:{S_DBG+3}], 0 offen sc1")
    a("s_mov_b64 exec, -1")
    a.label("L_pub_done")
    poll(a, "1", True, "s_waitcnt lgkmcnt(0)")
    if "tl" in OPT:
        a("s_memrealtime s[94:95]")
        a("s_waitcnt lgkmcnt(0)")
        a("v_mov_b32 v251, s94")
    a.label("L_go")
    a(f"s_lshl_b32 s{S_DOFF}, s34, 15")
    a(f"s_lshr_b32 s75, s{S_W8K}, 2")
    a(f"s_add_u32 m0, s75, {SEC_C}")
    a(f"s_sub_u32 s75, s75, s{S_W8K}")
    a(f"s_add_u32 s75, s75, {SEC_C}")
    a(f"s_add_u32 s75, s75, s{S_DOFF}")
    for i in range(2):
        a(f"buffer_load_dwordx4 v{V_DMA0}, s[{S_WS}:{S_WS+3}], s75 offen offset:{1024*i} lds")
    a(f"s_add_u32 s{S_DOFF}, s{S_DOFF}, 0x8000")
    a(f"s_and_b32 s{S_DOFF}, s{S_DOFF}, 0xfffff")
    a(f"s_add_u32 s{S_SLB}, s{S_W8K}, 0x8000")
    dma_tile(a)
    dma_tile(a)
    dma_tile(a)
    a("s_waitcnt vmcnt(26)")
    if "tl" in OPT:
        a("s_memrealtime s[74:75]")
        a("s_waitcnt lgkmcnt(0)")
    sc = Sched(a)
    for f in range(8):
        sc.read(f, V_AB, SEC_B + f * 1024)
    for k in range(64):
        sc.time += 1
        kvb, qb, ds = k >> 4, (k >> 2) & 3, k & 3
        f = 4 * (kvb & 1) + ds
        sc.need([f])
        d = S_(kvb, qb)
        c = "0" if ds == 0 else f"v[{d}:{d+3}]"
        a(f"{MF} v[{d}:{d+3}], a[{F_(f)}:{F_(f)+3}], a[{Q_(qb,ds)}:{Q_(qb,ds)+3}], {c}")
        if qb == 3 and kvb < 2:
            sc.read(f, V_AB, SEC_A + (kvb * 4 + ds) * 1024)
    a("s_nop 15")
    ms = [V_T + 2 * qb for qb in range(4)]
    for qb in range(4):
        rowmax(a, qb, ms[qb])
    xlane_max(a, ms)
    for qb in range(4):
        for r in range(4):
            a(f"v_sub_f32 v{NEGM+4*qb+r}, 0, v{ms[qb]}")
    for kvb in range(4):
        for qb in range(4):
            for r in range(4):
                s = S_(kvb, qb) + r
                a(f"v_add_f32 v{s}, v{s}, v{NEGM+4*qb}")
    for j in range(16, 64):
        a(exp_op(j, 1))
        if (j & 1) == 0 and j > 16:
            a(cvt_op(j - 1, 1))
    a("s_nop 0")
    a(cvt_op(63, 1))
    poll(a, "2", False, "s_waitcnt vmcnt(24) lgkmcnt(0)")
    for f in range(8):
        sc.read(f, V_AB, SEC_C + f * 1024)
    a("s_waitcnt lgkmcnt(0)")
    scratch = Asm()
    sc2 = Sched(scratch)
    for _ in range(3):
        gen_body(scratch, sc2, 0)
        gen_body(scratch, sc2, 1)
    state0 = (list(sc2.carry), [(f, sc2.time - t) for f, t in sc2.pending])
    sc2.a = a
    sc = sc2
    a(f"s_mov_b32 s{S_CNT}, 15")
    if "tl" in OPT:
        a("s_memrealtime s[76:77]")
        a("s_waitcnt lgkmcnt(0)")
    if "stamp" in OPT:
        a("s_memtime s[48:49]")
        a("s_memrealtime s[64:65]")
        a("s_waitcnt lgkmcnt(0)")
    a.raw(".p2align 6")
    a.label("L_loop")
    gen_body(a, sc, 0)
    gen_body(a, sc, 1)
    assert state0 == (list(sc.carry), [(f, sc.time - t) for f, t in sc.pending])
    a(f"s_sub_u32 s{S_CNT}, s{S_CNT}, 1")
    a(f"s_cmp_lg_u32 s{S_CNT}, 0")
    a("s_cbranch_scc1 L_loop")
    if "stamp" in OPT:
        a("s_memtime s[50:51]")
        a("s_memrealtime s[66:67]")
        a("s_waitcnt lgkmcnt(0)")
    if "tl" in OPT:
        a("s_memrealtime s[78:79]")
        a("s_waitcnt lgkmcnt(0)")
    gen_body(a, sc, 0)
    gen_body(a, sc, 1, last=True)
    a.label("L_epi")
    a("s_waitcnt vmcnt(0)")
    a("s_nop 15")
    a(f"s_mov_b32 s{S_TMP}, {f32bits(2.0**100):#x}")
    for qb in range(4):
        a(f"v_accvgpr_read_b32 v{V_R+qb}, a{L_(qb)}")
    a(f"v_max3_f32 v{V_T}, v{V_R}, v{V_R+1}, v{V_R+2}")
    a(f"v_max_f32 v{V_T}, v{V_T}, v{V_R+3}")
    a(f"v_add_f32 v{V_T+1}, v{V_R}, v{V_R+1}")
    a(f"v_add_f32 v{V_T+2}, v{V_R+2}, v{V_R+3}")
    a(f"v_cmp_nle_f32 s[40:41], v{V_T}, s{S_TMP}")
    a(f"v_cmp_u_f32 s[42:43], v{V_T+1}, v{V_T+2}")
    for qb in range(4):
        a(f"v_rcp_f32 v{V_R+qb}, v{V_R+qb}")
    a(f"v_mov_b32 v{V_T}, 0")
    a(f"v_mov_b32 v{V_T+1}, 0")
    for qb in range(4):
        for db in range(8):
            o = O_(qb, db)
            for r in range(0, 4, 2):
                t = 64 + ((db * 4 + r) & 7)
                a(f"v_accvgpr_read_b32 v{t}, a{o+r}")
                a(f"v_accvgpr_read_b32 v{t+1}, a{o+r+1}")
                a(f"v_mul_f32 v{t}, v{t}, v{V_R+qb}")
                a(f"v_mul_f32 v{t+1}, v{t+1}, v{V_R+qb}")
                a(f"v_fma_f32 v{V_T}, v{t}, 0, v{V_T}")
                a(f"v_fma_f32 v{V_T+1}, v{t+1}, 0, v{V_T+1}")
                a(f"v_cvt_pk_bf16_f32 v{qb*16+db*2+(r>>1)}, v{t}, v{t+1}")
    a(f"v_cmp_u_f32 vcc, v{V_T}, v{V_T+1}")
    a("s_or_b64 s[40:41], s[40:41], s[42:43]")
    a("s_or_b64 vcc, vcc, s[40:41]")
    a(f"s_cmp_lg_u32 s{S_FLAG}, 0")
    a("s_cbranch_scc1 L_store")
    if "nofb" not in OPT:
        a("s_cbranch_vccnz L_fallback")
    a.label("L_store")
    if "tl" in OPT:
        a("s_memrealtime s[80:81]")
    for qb in range(4):
        for e in range(4):
            r = qb * 16 + e * 4
            a(f"buffer_store_dwordx4 v[{r}:{r+3}], v{V_QOFF}, s[{S_OUT}:{S_OUT+3}], s{S_ROW+qb} offen offset:{e*64}")
    if "tl" in OPT:
        a("s_waitcnt vmcnt(0)")
        a("s_memrealtime s[82:83]")
        a("s_waitcnt lgkmcnt(0)")
        a("s_lshl_b32 s84, s2, 7")
        a("s_lshl_b32 s85, s32, 5")
        a("s_add_u32 s84, s84, s85")
        a("s_add_u32 s84, s84, 0x4100000")
        for i, r in enumerate((100, 74, 76, 78, 80, 82)):
            a(f"v_mov_b32 v{70+i}, s{r}")
        a("v_mov_b32 v76, v251")
        a("v_mov_b32 v77, 0")
        a("v_mov_b32 v78, 0")
        a("s_mov_b64 exec, 1")
        a(f"buffer_store_dwordx4 v[70:73], v78, s[{S_WS}:{S_WS+3}], s84 offen")
        a(f"buffer_store_dwordx4 v[74:77], v78, s[{S_WS}:{S_WS+3}], s84 offen offset:16")
        if "dbgtl" in OPT:
            a("s_mov_b64 exec, -1")
            a("v_subrev_u32 v60, s100, v249")
            a("v_subrev_u32 v61, s100, v251")
            a("v_subrev_u32 v62, s100, v72")
            a("v_subrev_u32 v63, s100, v75")
            a("s_mov_b64 exec, 1")
            a("s_and_b32 s85, s2, 63")
            a("s_lshr_b32 s86, s2, 6")
            a("s_cmp_lg_u32 s85, s86")
            a("s_cbranch_scc1 L_nodbg")
            a("s_cmp_lg_u32 s32, 0")
            a("s_cbranch_scc1 L_nodbg")
            a("s_lshl_b32 s86, s86, 4")
            a(f"buffer_store_dwordx4 v[60:63], v78, s[{S_DBG}:{S_DBG+3}], s86 offen")
            a.label("L_nodbg")
        a("s_add_u32 s84, s84, 0x100000")
        a(f"buffer_store_dwordx4 v[248:251], v78, s[{S_WS}:{S_WS+3}], s84 offen")
        a(f"buffer_store_dwordx4 v[252:255], v78, s[{S_WS}:{S_WS+3}], s84 offen offset:16")
    if "stamp" in OPT:
        a("s_memtime s[52:53]")
        a("s_memrealtime s[54:55]")
        a("s_waitcnt lgkmcnt(0)")
        a("s_sub_u32 s52, s52, s44")
        a("s_sub_u32 s54, s54, s46")
        a("s_sub_u32 s50, s50, s48")
        a("s_sub_u32 s48, s48, s44")
        a("s_sub_u32 s66, s66, s64")
        a("s_sub_u32 s64, s64, s46")
        srd(a, 60, 56, 256)
        a("s_lshl_b32 s58, s2, 5")
        a("s_cmp_ge_u32 s2, 8")
        a("s_cbranch_scc1 L_done")
        a("s_cmp_lg_u32 s32, 0")
        a("s_cbranch_scc1 L_done")
        a("s_nop 4")
        a("v_mov_b32 v70, s52")
        a("v_mov_b32 v71, s54")
        a("v_mov_b32 v72, s50")
        a("v_mov_b32 v73, s48")
        a("v_mov_b32 v74, 0")
        a("s_mov_b64 exec, 1")
        a("v_mov_b32 v76, s66")
        a("v_mov_b32 v77, s64")
        a("v_mov_b32 v78, 0")
        a("v_mov_b32 v79, 0")
        a("buffer_store_dwordx4 v[70:73], v74, s[60:63], s58 offen")
        a("buffer_store_dwordx4 v[76:79], v74, s[60:63], s58 offen offset:16")
    a.label("L_done")
    a("s_endpgm")

    a.label("L_selfhelp")
    a("s_waitcnt vmcnt(0) lgkmcnt(0)")
    a("s_barrier")
    a(f"s_mov_b32 s{S_HELPED}, 1")
    a(f"s_mov_b32 s{S_TILE}, 0")
    a.label("L_sh_tile")
    a(f"v_mov_b32 v{V_LW}, {NSLOT*SLOTB}")
    deq_loads(a)
    deq_outoffs(a)
    deq_compute(a, "1")
    a("s_waitcnt vmcnt(0) lgkmcnt(0)")
    a(f"s_add_u32 s{S_TILE}, s{S_TILE}, 1")
    a(f"s_cmp_lt_u32 s{S_TILE}, 32")
    a("s_cbranch_scc1 L_sh_tile")
    a("s_barrier")
    a("buffer_inv sc1")
    a("s_waitcnt vmcnt(0)")
    a("s_barrier")
    a("s_branch L_go")

    a.label("L_fallback")
    a(f"s_mov_b32 s{S_FLAG}, 1")
    for i in range(128):
        a(f"v_accvgpr_write_b32 a{i}, 0")
    for i in range(16):
        a(f"v_accvgpr_write_b32 a{L_(0)+i}, 0")
    for qb in range(4):
        a(f"v_mov_b32 v{V_M+qb}, {f32bits(-3.0e38):#x}")
    a("s_mov_b32 s39, 0")
    a(f"s_mov_b32 s{S_CNT}, 32")
    a.label("L_fb_loop")

    def fb_load8(delta):
        a(f"s_add_u32 s{S_DOFF}, s39, {delta & 0xffffffff:#x}")
        a(f"s_and_b32 s{S_DOFF}, s{S_DOFF}, 0xfffff")
        a(f"s_add_u32 s{S_DOFF}, s{S_DOFF}, s{S_HB}")
        for q4 in range(2):
            for i in range(4):
                f = q4 * 4 + i
                a(f"buffer_load_dwordx4 a[{F_(f)}:{F_(f)+3}], v{V_L16}, s[{S_WS}:{S_WS+3}], s{S_DOFF} offen offset:{1024*i}")
            a(f"s_add_u32 s{S_DOFF}, s{S_DOFF}, 0x1000")
        a("s_waitcnt vmcnt(0)")
    for half in range(2):
        fb_load8(-8192 if half == 0 else 0)
        for kv2 in range(2):
            kvb = half * 2 + kv2
            for qb in range(4):
                d = S_(kvb, qb)
                for ds in range(4):
                    f = kv2 * 4 + ds
                    c = "0" if ds == 0 else f"v[{d}:{d+3}]"
                    a(f"{MF} v[{d}:{d+3}], a[{F_(f)}:{F_(f)+3}], a[{Q_(qb,ds)}:{Q_(qb,ds)+3}], {c}")
        a("s_nop 15")
    for qb in range(4):
        rowmax(a, qb, ms[qb], extra=V_M + qb)
    xlane_max(a, ms)
    for qb in range(4):
        m = ms[qb]
        al = m + 1
        a(f"v_sub_f32 v{al}, v{V_M+qb}, v{m}")
        a(f"v_exp_f32 v{al}, v{al}")
        a(f"v_mov_b32 v{V_M+qb}, v{m}")
        regs = [O_(qb, db) + r for db in range(8) for r in range(4)] + [L_(qb) + r for r in range(4)]
        for o in regs:
            a(f"v_accvgpr_read_b32 v{V_T+8}, a{o}")
            a(f"v_mul_f32 v{V_T+8}, v{V_T+8}, v{al}")
            a(f"v_accvgpr_write_b32 a{o}, v{V_T+8}")
    for kvb in range(4):
        for qb in range(4):
            for r in range(4):
                s = S_(kvb, qb) + r
                a(f"v_sub_f32 v{s}, v{s}, v{ms[qb]}")
    for s in range(64):
        a(f"v_exp_f32 v{s}, v{s}")
    a("s_nop 0")
    for kvb in range(4):
        for qb in range(4):
            for r in range(0, 4, 2):
                s = S_(kvb, qb) + r
                p = P_(0, kvb >> 1, qb) + (kvb & 1) * 2 + (r >> 1)
                a(f"v_cvt_pk_bf16_f32 v{p}, v{s}, v{s+1}")
    a("s_nop 1")
    for qb in range(4):
        for s in range(2):
            p = P_(0, s, qb)
            a(f"{MF} a[{L_(qb)}:{L_(qb)+3}], a[{A_ONES}:{A_ONES+3}], v[{p}:{p+3}], a[{L_(qb)}:{L_(qb)+3}]")
    for half in range(2):
        fb_load8(SLOTB + SEC_B + half * 8192)
        for f in range(8):
            fv = half * 8 + f
            db, s = fv >> 1, fv & 1
            for qb in range(4):
                p = P_(0, s, qb)
                o = O_(qb, db)
                a(f"{MF} a[{o}:{o+3}], a[{F_(f)}:{F_(f)+3}], v[{p}:{p+3}], a[{o}:{o+3}]")
        a("s_nop 15")
    a(f"s_add_u32 s39, s39, {SLOTB}")
    a(f"s_sub_u32 s{S_CNT}, s{S_CNT}, 1")
    a(f"s_cmp_lg_u32 s{S_CNT}, 0")
    a("s_cbranch_scc1 L_fb_loop")
    a("s_branch L_epi")


def descriptor(a, name, vgpr, sgpr, accum):
    a.raw(f".amdhsa_kernel {name}")
    a.raw(f"  .amdhsa_next_free_vgpr {vgpr}")
    a.raw(f"  .amdhsa_next_free_sgpr {sgpr}")
    a.raw(f"  .amdhsa_accum_offset {accum}")
    a.raw("  .amdhsa_group_segment_fixed_size 0")
    a.raw("  .amdhsa_kernarg_size 80")
    a.raw("  .amdhsa_user_sgpr_count 2")
    a.raw("  .amdhsa_user_sgpr_kernarg_segment_ptr 1")
    a.raw("  .amdhsa_system_sgpr_workgroup_id_x 1")
    a.raw(".end_amdhsa_kernel")


def main():
    out = sys.argv[1] if len(sys.argv) > 1 else OUT
    a = Asm()
    a.raw(HEADER.rstrip("\n"))
    if "list" in OPT:
        a.raw(f"; @launch kernel={NAME}_kernel grid=(256,1,1) block=(256,1,1) lds={NSLOT*SLOTB+8192}")
    else:
        a.raw(f"; @launch grid=(256,1,1) block=(256,1,1) lds={NSLOT*SLOTB+8192}")
    a.raw('.amdgcn_target "amdgcn-amd-amdhsa--gfx950"')
    a.raw(".text")
    gen_main(a)
    a.raw('.section .rodata,"a"')
    a.raw(".p2align 6")
    descriptor(a, NAME + "_kernel", 512, 102, 256)
    open(out, "w").write(a.text())


if __name__ == "__main__":
    main()
```

```python
import math
import os
import struct
import sys

OPT = set(os.environ.get("GENOPT", "").split(",")) | {"noinv", "nt", "ntst", "dmasc1"}
OPT -= set(os.environ.get("GENNOT", "").split(","))
NAME = "standalone__kv_cache_quant_int4_int2_kv_with_per_channel_or_per_token_scales__prompt"
OUT = f"cdna_kernels/{NAME}.s"

HEADER = """; Kernarg layout for this problem (80 bytes, ptrs only, base s[0:1]):
;   offset   0: d_in[0] q  shape=(1, 32, 2048, 128) dtype=bfloat16 strides=(16777216, 524288, 256, 2) contiguous=True
;   offset   8: d_in[1] qk  shape=(1, 8, 2048, 128) dtype=int32 strides=(8388608, 1048576, 512, 4) contiguous=True
;   offset  16: d_in[2] qv  shape=(1, 8, 2048, 128) dtype=int32 strides=(8388608, 1048576, 512, 4) contiguous=True
;   offset  24: d_in[3] k_scales  shape=(1, 8, 32, 128) dtype=bfloat16 strides=(65536, 8192, 256, 2) contiguous=True
;   offset  32: d_in[4] k_zeros  shape=(1, 8, 32, 128) dtype=bfloat16 strides=(65536, 8192, 256, 2) contiguous=True
;   offset  40: d_in[5] v_scales  shape=(1, 8, 2048, 1) dtype=bfloat16 strides=(32768, 4096, 2, 2) contiguous=True
;   offset  48: d_in[6] v_zeros  shape=(1, 8, 2048, 1) dtype=bfloat16 strides=(32768, 4096, 2, 2) contiguous=True
;
; Phase 1: it dequantises its own 64-token K/V tile (same bf16 rounding steps as the reference; the
;   softmax scale * log2(e) is folded into K) into d_ws as ready-to-use MFMA fragments (write-through
;   need (agent-scope loads); if a producer never shows up they dequantise the whole head themselves.
; Phase 2: flash attention for (q head, 256 query rows), 4 waves x 64 rows, kv tiles visited
;   through the MFMA C operand), P = exp2(S^T), O^T += V^T P^T, row sums via a ones-operand MFMA.
;   If a later tile makes that reference max unsafe (row sum too large / non finite output) the wave
"""


def f32bits(x):
    return struct.unpack("<I", struct.pack("<f", x))[0]


class Asm:
    def __init__(self):
        self.lines = []

    def __call__(self, s):
        if "nt" in OPT and s.startswith("buffer_load_dwordx4") and " lds" not in s and ("s[44:47]" in s or "s[48:51]" in s or "s[8:11]" in s):
            s += " nt"
        if "dmasc1" in OPT and s.startswith("buffer_load_dwordx4") and "s[4:7]" in s:
            s = s.replace(" lds", " sc1 lds") if " lds" in s else s + " sc1"
        if "ntst" in OPT and s.startswith("buffer_store_dwordx4") and "s[12:15]" in s:
            s += " nt"
        self.lines.append("    " + s)

    def label(self, s):
        self.lines.append(s + ":")

    def raw(self, s):
        self.lines.append(s)

    def text(self):
        return "\n".join(self.lines) + "\n"


def srd(a, d, base, nbytes):
    a(f"s_mov_b32 s{d}, s{base}")
    a(f"s_and_b32 s{d+1}, s{base+1}, 0xffff")
    a(f"s_mov_b32 s{d+2}, {nbytes:#x}")
    a(f"s_mov_b32 s{d+3}, 0x00020000")


S_QK, S_QV, S_KS, S_KZ, S_VS, S_VZ, S_DBG = 44, 48, 52, 56, 60, 64, 68
S_TILE, S_TASK = 72, 73
S_MASK, S_CS = 84, 86
S_I8, S_I4, S_MODE, S_PCNT, S_HELPED = 88, 89, 90, 91, 92
KD, KSC, KZR = 16, 48, 64
WW, ZZ, SS, TT, OO = 80, 88, 96, 104, 108
VD, VRAW, VUN = 128, 192, 200
V_KIN, V_KSO, V_VIN, V_VSO, V_VOUT, V_LW, V_NEED, V_VST, V_VRD = 240, 241, 242, 243, 244, 245, 246, 247, 191


def deq_lane_k(a, lane):
    a(f"v_and_b32 v6, 15, v{lane}")
    a(f"v_lshrrev_b32 v7, 4, v{lane}")
    a(f"v_lshlrev_b32 v{V_KIN}, 9, v6")
    a(f"v_lshl_add_u32 v{V_KIN}, v7, 5, v{V_KIN}")
    a(f"v_lshlrev_b32 v{V_KSO}, 4, v7")
    a(f"v_and_b32 v8, 31, v{lane}")
    a(f"v_lshrrev_b32 v9, 5, v{lane}")
    a(f"v_lshlrev_b32 v{V_VIN}, 11, v9")
    a(f"v_lshl_add_u32 v{V_VIN}, v8, 4, v{V_VIN}")
    a(f"v_lshlrev_b32 v{V_VSO}, 3, v9")


def deq_lane_v(a):
    a("v_lshrrev_b32 v10, 3, v8")
    a(f"v_lshlrev_b32 v{V_VOUT}, 12, v10")
    a("v_and_b32 v10, 1, v8")
    a(f"v_lshl_add_u32 v{V_VOUT}, v10, 11, v{V_VOUT}")
    a("v_bfe_u32 v10, v8, 1, 2")
    a(f"v_lshl_add_u32 v{V_VOUT}, v10, 6, v{V_VOUT}")
    a(f"v_lshl_add_u32 v{V_VOUT}, v9, 8, v{V_VOUT}")
    a(f"v_lshlrev_b32 v{V_VST}, 11, v9")
    a(f"v_lshl_add_u32 v{V_VST}, v8, 4, v{V_VST}")
    a("s_lshl_b32 s75, s78, 10")
    a("s_lshl_b32 s76, s79, 9")
    a("s_add_u32 s75, s75, s76")
    a(f"s_add_u32 s75, s75, {32768 + 8192}")
    a(f"v_add_u32 v{V_VOUT}, s75, v{V_VOUT}")
    a(f"v_add_u32 v{V_VRD}, s75, v{V_VST}")


def deq_loads(a):
    a("s_lshl_b32 s75, s33, 5")
    a(f"s_add_u32 s75, s75, s{S_TILE}")
    a("s_lshl_b32 s76, s75, 8")
    a("s_lshl_b32 s77, s75, 6")
    a(f"s_lshl_b32 s74, s{S_TASK}, 4")
    a("s_add_u32 s74, s74, s77")
    a("s_lshl_b32 s74, s74, 9")
    for i in range(4):
        a(f"buffer_load_dwordx4 v[{KD+8*i}:{KD+8*i+3}], v{V_KIN}, s[{S_QK}:{S_QK+3}], s74 offen offset:{128*i}")
        a(f"buffer_load_dwordx4 v[{KD+8*i+4}:{KD+8*i+7}], v{V_KIN}, s[{S_QK}:{S_QK+3}], s74 offen offset:{128*i+16}")
    for i in range(4):
        a(f"buffer_load_dwordx4 v[{KSC+4*i}:{KSC+4*i+3}], v{V_KSO}, s[{S_KS}:{S_KS+3}], s76 offen offset:{64*i}")
        a(f"buffer_load_dwordx4 v[{KZR+4*i}:{KZR+4*i+3}], v{V_KSO}, s[{S_KZ}:{S_KZ+3}], s76 offen offset:{64*i}")
    a(f"s_lshr_b32 s78, s{S_TASK}, 1")
    a(f"s_and_b32 s79, s{S_TASK}, 1")
    a("s_lshl_b32 s75, s78, 5")
    a("s_add_u32 s77, s77, s75")
    a("s_lshl_b32 s75, s79, 3")
    a("s_add_u32 s77, s77, s75")
    a("s_lshl_b32 s80, s77, 1")
    a("s_lshl_b32 s77, s77, 9")
    a("s_add_u32 s81, s77, 8192")
    for j in range(8):
        so = "s77" if j < 4 else "s81"
        a(f"buffer_load_dwordx4 v[{VD+4*j}:{VD+4*j+3}], v{V_VIN}, s[{S_QV}:{S_QV+3}], {so} offen offset:{512*(j&3)}")
    a(f"buffer_load_dwordx2 v[{VRAW}:{VRAW+1}], v{V_VSO}, s[{S_VS}:{S_VS+3}], s80 offen")
    a(f"buffer_load_dwordx2 v[{VRAW+2}:{VRAW+3}], v{V_VSO}, s[{S_VS}:{S_VS+3}], s80 offen offset:32")
    a(f"buffer_load_dwordx2 v[{VRAW+4}:{VRAW+5}], v{V_VSO}, s[{S_VZ}:{S_VZ+3}], s80 offen")
    a(f"buffer_load_dwordx2 v[{VRAW+6}:{VRAW+7}], v{V_VSO}, s[{S_VZ}:{S_VZ+3}], s80 offen offset:32")


def deq_outoffs(a):
    a(f"s_lshl_b32 s82, s{S_TILE}, 15")
    a("s_add_u32 s83, s82, 0x8000")
    a("s_and_b32 s83, s83, 0xfffff")
    a("s_add_u32 s83, s83, 8192")
    a("s_lshl_b32 s75, s78, 10")
    a("s_add_u32 s83, s83, s75")
    a("s_lshl_b32 s75, s79, 9")
    a("s_add_u32 s83, s83, s75")
    a(f"s_add_u32 s83, s83, s{S_HB}")
    a(f"s_lshl_b32 s75, s{S_TASK}, 12")
    a("s_add_u32 s82, s82, s75")
    a("s_sub_u32 s82, s82, 8192")
    a("s_and_b32 s82, s82, 0xfffff")
    a(f"s_add_u32 s82, s82, s{S_HB}")


def rnd_unpack(a):
    for p in range(4):
        a(f"v_cvt_pk_bf16_f32 v{TT+p}, v{WW+2*p}, v{WW+2*p+1}")
    for p in range(4):
        a(f"v_lshlrev_b32 v{WW+2*p}, 16, v{TT+p}")
        a(f"v_and_b32 v{WW+2*p+1}, s{S_MASK}, v{TT+p}")


def deq_compute(a, tag, extra=0):
    a(f"s_waitcnt vmcnt({12+extra})")
    a(f"s_mov_b32 s{S_I8}, 0")
    a(f"s_mov_b32 s{S_I4}, 0")
    a.label(f"L_dk{tag}")
    a(f"s_set_gpr_idx_on s{S_I8}, gpr_idx(SRC0)")
    a("s_nop 1")
    for k in range(8):
        a(f"v_cvt_f32_i32 v{WW+k}, v{KD+k}")
    a(f"s_set_gpr_idx_idx s{S_I4}")
    a("s_set_gpr_idx_mode gpr_idx(SRC1)")
    a("s_nop 1")
    for p in range(4):
        a(f"v_lshlrev_b32 v{ZZ+2*p}, 16, v{KZR+p}")
        a(f"v_and_b32 v{ZZ+2*p+1}, s{S_MASK}, v{KZR+p}")
        a(f"v_lshlrev_b32 v{SS+2*p}, 16, v{KSC+p}")
        a(f"v_and_b32 v{SS+2*p+1}, s{S_MASK}, v{KSC+p}")
    a("s_set_gpr_idx_off")
    a("s_nop 1")
    for p in range(4):
        a(f"v_pk_add_f32 v[{WW+2*p}:{WW+2*p+1}], v[{WW+2*p}:{WW+2*p+1}], v[{ZZ+2*p}:{ZZ+2*p+1}] neg_lo:[0,1] neg_hi:[0,1]")
    rnd_unpack(a)
    for p in range(4):
        a(f"v_pk_mul_f32 v[{WW+2*p}:{WW+2*p+1}], v[{WW+2*p}:{WW+2*p+1}], v[{SS+2*p}:{SS+2*p+1}]")
    rnd_unpack(a)
    for p in range(4):
        a(f"v_pk_mul_f32 v[{WW+2*p}:{WW+2*p+1}], v[{WW+2*p}:{WW+2*p+1}], s[{S_CS}:{S_CS+1}]")
    for p in range(4):
        a(f"v_cvt_pk_bf16_f32 v{OO+p}, v{WW+2*p}, v{WW+2*p+1}")
    a(f"buffer_store_dwordx4 v[{OO}:{OO+3}], v{V_L16}, s[{S_WS}:{S_WS+3}], s82 offen sc1")
    a(f"ds_write_b128 v{V_LW}, v[{OO}:{OO+3}]")
    a(f"v_add_u32 v{V_LW}, 0x400, v{V_LW}")
    a("s_add_u32 s82, s82, 0x400")
    a(f"s_add_u32 s{S_I8}, s{S_I8}, 8")
    a(f"s_add_u32 s{S_I4}, s{S_I4}, 4")
    a(f"s_cmp_lt_u32 s{S_I4}, 16")
    a(f"s_cbranch_scc1 L_dk{tag}")
    a(f"s_waitcnt vmcnt({4+extra})")
    for p in range(4):
        a(f"v_lshlrev_b32 v{SS+2*p}, 16, v{VRAW+p}")
        a(f"v_and_b32 v{SS+2*p+1}, s{S_MASK}, v{VRAW+p}")
        a(f"v_lshlrev_b32 v{ZZ+2*p}, 16, v{VRAW+4+p}")
        a(f"v_and_b32 v{ZZ+2*p+1}, s{S_MASK}, v{VRAW+4+p}")
    a(f"s_mov_b32 s{S_I4}, 0")
    a.label(f"L_dv{tag}")
    a(f"s_set_gpr_idx_on s{S_I4}, gpr_idx(SRC0)")
    a("s_nop 1")
    for j in range(8):
        a(f"v_cvt_f32_i32 v{WW+j}, v{VD+4*j}")
    a("s_set_gpr_idx_off")
    a("s_nop 1")
    for p in range(4):
        a(f"v_pk_add_f32 v[{WW+2*p}:{WW+2*p+1}], v[{WW+2*p}:{WW+2*p+1}], v[{ZZ+2*p}:{ZZ+2*p+1}] neg_lo:[0,1] neg_hi:[0,1]")
    rnd_unpack(a)
    for p in range(4):
        a(f"v_pk_mul_f32 v[{WW+2*p}:{WW+2*p+1}], v[{WW+2*p}:{WW+2*p+1}], v[{SS+2*p}:{SS+2*p+1}]")
    for p in range(4):
        a(f"v_cvt_pk_bf16_f32 v{OO+p}, v{WW+2*p}, v{WW+2*p+1}")
    a(f"ds_write_b128 v{V_VOUT}, v[{OO}:{OO+3}]")
    a(f"v_add_u32 v{V_VOUT}, 16, v{V_VOUT}")
    a(f"s_add_u32 s{S_I4}, s{S_I4}, 1")
    a(f"s_cmp_lt_u32 s{S_I4}, 4")
    a(f"s_cbranch_scc1 L_dv{tag}")
    a(f"v_add_u32 v{V_VOUT}, -64, v{V_VOUT}")
    for k in range(4):
        a(f"ds_read_b128 v[{KD+4*k}:{KD+4*k+3}], v{V_VRD} offset:{4096*k}")
    for k in range(4):
        a(f"s_waitcnt lgkmcnt({3-k})")
        a(f"buffer_store_dwordx4 v[{KD+4*k}:{KD+4*k+3}], v{V_VST}, s[{S_WS}:{S_WS+3}], s83 offen sc1")
        if k < 3:
            a("s_add_u32 s83, s83, 0x1000")


def poll(a, tag, masked, pre_barrier):
    a(f"v_mov_b32 v{V_T+2}, {NSLOT*SLOTB + 4096 + 64 * int(tag)}")
    a("s_cmp_lg_u32 s32, 0")
    a(f"s_cbranch_scc1 L_pw{tag}")
    a(f"s_mov_b32 s{S_MODE}, 1")
    a(f"s_cmp_lg_u32 s{S_HELPED}, 0")
    a(f"s_cbranch_scc1 L_pok{tag}")
    a(f"s_mov_b32 s{S_PCNT}, 0")
    a.label(f"L_poll{tag}")
    a(f"buffer_load_ubyte v{V_T}, v{V_POLL}, s[{S_DBG}:{S_DBG+3}], 0 offen sc1")
    a(f"s_waitcnt vmcnt(0)")
    if masked:
        a(f"v_or_b32 v{V_T}, v{V_T}, v{V_NEED}")
    a(f"v_cmp_eq_u32 vcc, 0, v{V_T}")
    a(f"s_add_u32 s{S_PCNT}, s{S_PCNT}, 1")
    a("s_nop 3")
    a(f"s_cbranch_vccz L_pdone{tag}")
    a(f"s_sleep {SLEEP}")
    a(f"s_cmp_lt_u32 s{S_PCNT}, {0 if ('selfhelp' + tag) in OPT else 6000}")
    a(f"s_cbranch_scc1 L_poll{tag}")
    a(f"s_mov_b32 s{S_MODE}, 2")
    a.label(f"L_pdone{tag}")
    if "noinv" not in OPT:
        a("buffer_inv sc1")
        a("s_waitcnt vmcnt(0)")
    a.label(f"L_pok{tag}")
    a(f"v_mov_b32 v{V_T}, s{S_MODE}")
    a(f"ds_write_b32 v{V_T+2}, v{V_T}")
    a.label(f"L_pw{tag}")
    a(pre_barrier)
    a("s_barrier")
    a(f"ds_read_b32 v{V_T}, v{V_T+2}")
    a("s_waitcnt lgkmcnt(0)")
    a(f"v_readfirstlane_b32 s{S_MODE}, v{V_T}")
    a("s_nop 3")
    a(f"s_cmp_eq_u32 s{S_MODE}, 2")
    a("s_cbranch_scc1 L_selfhelp")


SLEEP = int(os.environ.get("SLEEP", "4"))


def O_(qb, db):
    return (qb * 8 + db) * 4


def Q_(qb, ds):
    return 128 + (qb * 4 + ds) * 4


def F_(i):
    return 192 + 4 * i


def L_(qb):
    return 224 + 4 * qb


A_ONES = 240


def S_(kvb, qb):
    return (kvb * 4 + qb) * 4


NEGM = 64
PB = 96


def P_(par, s, qb):
    return PB + par * 32 + (s * 4 + qb) * 4


V_L16 = 164
V_AB = 165
V_DMA0 = 168
V_DMA1 = 169
V_T = 170
V_QOFF = 180
V_M = 182
V_R = 186
V_POLL = 190

S_WS, S_Q, S_OUT = 4, 8, 12
S_CNT = 16
S_DOFF = 17
S_SLB = 19
S_TMP = 20
S_HB = 22
S_W8K = 23
S_FLAG = 24
S_ROW = 35

NSLOT = 4
SLOTB = 32768
MF = "v_mfma_f32_16x16x32_bf16"
SEC_A, SEC_B, SEC_C = 0, 8192, 24576


class Sched:
    def __init__(self, a, lead=6):
        self.a = a
        self.pending = []
        self.time = 0
        self.lead = lead
        self.carry = [-1]

    def read(self, frag, addr_v, off):
        if "nord" not in OPT:
            self.a(f"ds_read_b128 a[{F_(frag)}:{F_(frag)+3}], v{addr_v} offset:{off}")
        self.pending.append((frag, self.time))

    def need(self, frags, extra=""):
        idx = None
        for i, (f, t) in enumerate(self.pending):
            if f in frags:
                idx = i
        if idx is None:
            return False
        while idx + 1 < len(self.pending) and self.time - self.pending[idx + 1][1] >= self.lead:
            idx += 1
        n = len(self.pending) - 1 - idx
        self.a(f"s_waitcnt lgkmcnt({n})")
        self.pending = self.pending[idx + 1:]
        return True


def elem(j, par_cur):
    if j < 16:
        e, par = 48 + j, par_cur
    else:
        e, par = j - 16, par_cur ^ 1
    B, r = e >> 2, e & 3
    kvb, qb = B >> 2, B & 3
    return S_(kvb, qb) + r, P_(par, kvb >> 1, qb) + (kvb & 1) * 2 + (r >> 1)


def exp_op(j, par):
    s, _ = elem(j, par)
    return f"v_exp_f32 v{s}, v{s}"


def cvt_op(j, par):
    if j < 0:
        j, par = j + 64, par ^ 1
    s, p = elem(j, par)
    return f"v_cvt_pk_bf16_f32 v{p}, v{s-1}, v{s}"


def dma_op(i):
    v = V_DMA0 if i < 4 else V_DMA1
    return f"buffer_load_dwordx4 v{v}, s[{S_WS}:{S_WS+3}], s{S_DOFF} offen offset:{1024*(i&3)} lds"


def dma_tile(a):
    for i in range(8):
        if i == 0:
            a(f"s_mov_b32 m0, s{S_SLB}")
            a("s_nop 0")
        if i == 4:
            a(f"s_add_u32 m0, s{S_SLB}, 0x1000")
            a("s_nop 0")
        a(dma_op(i))
    a(f"s_add_u32 s{S_DOFF}, s{S_DOFF}, 0x8000")
    a(f"s_and_b32 s{S_DOFF}, s{S_DOFF}, 0xfffff")
    a(f"s_add_u32 s{S_SLB}, s{S_SLB}, 0x8000")
    a(f"s_and_b32 s{S_SLB}, s{S_SLB}, 0x1ffff")


NS = 136
PV0 = 72
BAR = 11
DMA_SLOTS = [21, 37, 53, 69, 85, 101, 117, 131]
FREE_EVEN = {10, 46, 90, 134}
CVQ_MAX = 5


def mfma_info(k):
    if k < 64:
        kvb, qb, ds = k >> 4, (k >> 2) & 3, k & 3
        return ("qk", (kvb, qb, ds), 4 * (kvb & 1) + ds)
    if k < PV0:
        return ("sum", ((k - 64) >> 1, (k - 64) & 1), None)
    i = k - PV0
    db, qb, s = i >> 3, (i >> 1) & 3, i & 1
    return ("pv", (db, qb, s), (2 * db + s) & 7)


def gen_body(a, sc, par, last=False, dma=True):
    ubase = ((par ^ 1)) * SLOTB
    exq = list(range(16 if last else 64))
    cvq = list(sc.carry)
    rdq = []
    misc = []
    if not last:
        misc.append((13, [f"s_mov_b32 m0, s{S_SLB}"]))
        misc.append((70, [f"s_add_u32 m0, s{S_SLB}, 0x1000"]))
        misc.append((132, [f"s_add_u32 s{S_DOFF}, s{S_DOFF}, 0x8000"]))
        misc.append((132, [f"s_and_b32 s{S_DOFF}, s{S_DOFF}, 0xfffff"]))
        misc.append((132, [f"s_add_u32 s{S_SLB}, s{S_SLB}, 0x8000"]))
        misc.append((132, [f"s_and_b32 s{S_SLB}, s{S_SLB}, 0x1ffff"]))
    dmai = 0
    pend_cv = []
    for k in range(NS):
        sc.time += 1
        kind, prm, f = mfma_info(k)
        units = 2
        if f is not None and not (last and kind == "qk"):
            assert all(r[0] != f for r in rdq), (k, f, rdq)
        if kind == "qk":
            kvb, qb, ds = prm
            if not last:
                if sc.need([f]):
                    pass
                d = S_(kvb, qb)
                c = f"v[{NEGM+4*qb}:{NEGM+4*qb+3}]" if ds == 0 else f"v[{d}:{d+3}]"
                a(f"{MF} v[{d}:{d+3}], a[{F_(f)}:{F_(f)+3}], a[{Q_(qb,ds)}:{Q_(qb,ds)+3}], {c}")
            if qb == 3:
                if kvb < 2:
                    if not last:
                        rdq.append((f, V_AB, ubase + SEC_A + (kvb * 4 + ds) * 1024))
                else:
                    rdq.append((f, V_AB, ubase + SEC_B + f * 1024))
        elif kind == "sum":
            qb, s = prm
            p = P_(par, s, qb)
            a(f"{MF} a[{L_(qb)}:{L_(qb)+3}], a[{A_ONES}:{A_ONES+3}], v[{p}:{p+3}], a[{L_(qb)}:{L_(qb)+3}]")
        else:
            db, qb, s = prm
            fv = 2 * db + s
            sc.need([f])
            p = P_(par, s, qb)
            o = O_(qb, db)
            a(f"{MF} a[{o}:{o+3}], a[{F_(f)}:{F_(f)+3}], v[{p}:{p+3}], a[{o}:{o+3}]")
            if qb == 3:
                if fv < 8:
                    rdq.append((f, V_AB, ubase + SEC_B + (fv + 8) * 1024))
                elif not last:
                    rdq.append((f, V_AB, ubase + SEC_C + (fv - 8) * 1024))
        cvq += pend_cv
        pend_cv = []
        if k == BAR:
            if last:
                a("s_waitcnt vmcnt(0) lgkmcnt(0)")
            else:
                a("s_waitcnt vmcnt(16) lgkmcnt(0)")
            sc.pending = []
            if "nobar" not in OPT:
                a("s_barrier")
            continue
        if k in DMA_SLOTS and not last:
            if "nodma" not in OPT:
                a(dma_op(dmai))
            dmai += 1
            continue
        if (k & 1) == 0 and k not in FREE_EVEN:
            if exq:
                j = exq.pop(0)
                if "nosm" not in OPT and "noexp" not in OPT:
                    a(exp_op(j, par))
                if j & 1:
                    pend_cv.append(j)
                continue
        nxt = []
        for kk in (k + 1, k + 2):
            if kk < NS:
                kd, _, ff = mfma_info(kk)
                if ff is not None and not (last and kd == "qk"):
                    nxt.append(ff)
        light = 1
        if sc.need(nxt):
            light -= 1
        did_read = False
        if rdq and k > BAR:
            sc.read(*rdq.pop(0))
            did_read = True
        if did_read and not (len(cvq) >= CVQ_MAX and light > 0):
            pass
        elif cvq:
            if did_read:
                light -= 1
            j = cvq.pop(0)
            if last and k < 64:
                a("s_nop 0")
            if "nosm" not in OPT and "nocvt" not in OPT:
                a(cvt_op(j, par))
        else:
            light += 1
        while light > 0 and misc and misc[0][0] <= k:
            for t in misc.pop(0)[1]:
                a(t)
            light -= 1
    cvq += pend_cv
    if last:
        assert not cvq
    assert all(j >= 40 for j in cvq), cvq
    sc.carry = [j - 64 for j in cvq]
    for r in rdq:
        sc.read(*r)
    for m in misc:
        for t in m[1]:
            a(t)
    assert not exq
    if par == 0 and not last:
        a(f"v_xor_b32 v{V_AB}, 0x10000, v{V_AB}")


def gen_last(a, sc, par):
    ubase = (par ^ 1) * SLOTB
    a("s_waitcnt vmcnt(0) lgkmcnt(0)")
    a("s_barrier")
    sc.pending = []
    for db in range(8):
        sc.read(db, V_AB, ubase + SEC_B + (2 * db) * 1024)
    ops = [cvt_op(j, par) for j in sc.carry]
    for j in range(16):
        ops.append(exp_op(j, par))
        if j >= 2 and (j & 1) == 0:
            ops.append(cvt_op(j - 1, par))
    ops.append("s_nop 0")
    ops.append(cvt_op(15, par))
    npre = len(sc.carry) + 4
    for op in ops[:npre]:
        a(op)
    ops = ops[npre:]
    sc.time += 8
    for db in range(8):
        for qb in range(4):
            sc.time += 1
            sc.need([db])
            p = P_(par, 0, qb)
            o = O_(qb, db)
            a(f"{MF} a[{o}:{o+3}], a[{F_(db)}:{F_(db)+3}], v[{p}:{p+3}], a[{o}:{o+3}]")
            if ops:
                a(ops.pop(0))
            if qb == 3:
                sc.read(db, V_AB, ubase + SEC_B + (2 * db + 1) * 1024)
    assert not ops
    a("s_nop 1")
    for qb in range(4):
        for s_ in range(2):
            p = P_(par, s_, qb)
            a(f"{MF} a[{L_(qb)}:{L_(qb)+3}], a[{A_ONES}:{A_ONES+3}], v[{p}:{p+3}], a[{L_(qb)}:{L_(qb)+3}]")
    RR = 64
    CH = 72
    TB = 0
    pre = [f"s_mov_b32 s{S_TMP}, {f32bits(2.0**100):#x}", f"v_mov_b32 v{CH}, 0", f"v_mov_b32 v{CH+1}, 0"]
    for qb in range(4):
        pre.append(f"v_accvgpr_read_b32 v{V_R+qb}, a{L_(qb)}")
    pre += [f"v_max3_f32 v{V_T}, v{V_R}, v{V_R+1}, v{V_R+2}",
            f"v_max_f32 v{V_T}, v{V_T}, v{V_R+3}",
            f"v_add_f32 v{V_T+1}, v{V_R}, v{V_R+1}",
            f"v_add_f32 v{V_T+2}, v{V_R+2}, v{V_R+3}",
            f"v_cmp_nle_f32 s[40:41], v{V_T}, s{S_TMP}",
            f"v_cmp_u_f32 s[42:43], v{V_T+1}, v{V_T+2}"]
    for qb in range(4):
        pre.append(f"v_rcp_f32 v{RR+2*qb}, v{V_R+qb}")
    pre.append("s_nop 0")
    for qb in range(4):
        pre.append(f"v_mov_b32 v{RR+2*qb+1}, v{RR+2*qb}")

    def chunk(e, qb):
        t = TB + 8 * qb
        po = 32 + 4 * qb
        o = O_(qb, 2 * e)
        r = []
        for i in range(8):
            r.append(f"v_accvgpr_read_b32 v{t+i}, a{o+i}")
        for i in range(0, 8, 2):
            r.append(f"v_pk_mul_f32 v[{t+i}:{t+i+1}], v[{t+i}:{t+i+1}], v[{RR+2*qb}:{RR+2*qb+1}]")
        for i in range(0, 8, 2):
            r.append(f"v_pk_fma_f32 v[{CH}:{CH+1}], v[{t+i}:{t+i+1}], 0, v[{CH}:{CH+1}]")
        for i in range(0, 8, 2):
            r.append(f"v_cvt_pk_bf16_f32 v{po+(i>>1)}, v{t+i}, v{t+i+1}")
        r.append(f"buffer_store_dwordx4 v[{po}:{po+3}], v{V_QOFF}, s[{S_OUT}:{S_OUT+3}], s{S_ROW+qb} offen offset:{e*64}")
        return r
    work = []
    for db in range(8):
        for qb in range(4):
            sc.time += 1
            sc.need([db])
            p = P_(par, 1, qb)
            o = O_(qb, db)
            a(f"{MF} a[{o}:{o+3}], a[{F_(db)}:{F_(db)+3}], v[{p}:{p+3}], a[{o}:{o+3}]")
            idx = db * 4 + qb
            if idx == 3:
                work += pre
            if db >= 2 and (db & 1) == 0 and qb == 2:
                for q2 in range(4):
                    work += chunk((db >> 1) - 1, q2)
            if idx == 3:
                a("s_nop 7")
            for _ in range(10):
                if work:
                    a(work.pop(0))
    for w_ in work:
        a(w_)
    a("s_nop 7")
    for q2 in range(4):
        for w_ in chunk(3, q2):
            a(w_)
    a(f"v_cmp_u_f32 vcc, v{CH}, v{CH+1}")
    a("s_or_b64 s[40:41], s[40:41], s[42:43]")
    a("s_or_b64 vcc, vcc, s[40:41]")
    if "nofb" not in OPT:
        a("s_cbranch_vccnz L_fallback")
    a("s_branch L_fin")


def rowmax(a, qb, m, extra=None):
    regs = [S_(kvb, qb) + r for kvb in range(4) for r in range(4)]
    if extra is None:
        a(f"v_max3_f32 v{m}, v{regs[0]}, v{regs[1]}, v{regs[2]}")
        for i in range(3, 15, 2):
            a(f"v_max3_f32 v{m}, v{m}, v{regs[i]}, v{regs[i+1]}")
        a(f"v_max_f32 v{m}, v{m}, v{regs[15]}")
    else:
        a(f"v_max3_f32 v{m}, v{regs[0]}, v{regs[1]}, v{extra}")
        for i in range(2, 16, 2):
            a(f"v_max3_f32 v{m}, v{m}, v{regs[i]}, v{regs[i+1]}")


def xlane_max(a, ms):
    for sw in ("v_permlane16_swap_b32", "v_permlane32_swap_b32"):
        for m in ms:
            a(f"v_mov_b32 v{m+1}, v{m}")
        a("s_nop 1")
        for m in ms:
            a(f"{sw} v{m}, v{m+1}")
        a("s_nop 1")
        for m in ms:
            a(f"v_max_f32 v{m}, v{m}, v{m+1}")


def gen_main(a):
    K = NAME + "_kernel"
    a.raw(".p2align 8")
    a.raw(f".globl {K}")
    a.raw(f".type {K},@function")
    a.label(K)
    a("s_cmp_ge_u32 s2, 256")
    a("s_cbranch_scc1 L_done")
    a("s_load_dwordx4 s[92:95], s[0:1], 0")
    a("s_load_dwordx4 s[96:99], s[0:1], 16")
    a("s_load_dwordx4 s[24:27], s[0:1], 32")
    a("s_load_dwordx4 s[28:31], s[0:1], 48")
    a("s_load_dwordx4 s[88:91], s[0:1], 64")
    if "tl" in OPT:
        a("s_memrealtime s[100:101]")
    a(f"v_lshrrev_b32 v{V_T}, 6, v0")
    a(f"v_and_b32 v{V_T+1}, 63, v0")
    a(f"v_readfirstlane_b32 s32, v{V_T}")
    if "scramble" in OPT:
        a("s_lshr_b32 s33, s2, 5")
        a("s_and_b32 s34, s2, 31")
    else:
        a("s_and_b32 s33, s2, 7")
        a("s_lshr_b32 s34, s2, 3")
    a(f"s_mov_b32 s{S_TILE}, s34")
    a(f"s_mov_b32 s{S_TASK}, s32")
    deq_lane_k(a, V_T + 1)
    a("s_waitcnt lgkmcnt(0)")
    srd(a, S_QK, 94, 0x800000)
    srd(a, S_KS, 98, 0x10000)
    srd(a, S_KZ, 24, 0x10000)
    srd(a, S_QV, 96, 0x800000)
    srd(a, S_VS, 26, 0x8000)
    srd(a, S_VZ, 28, 0x8000)
    deq_loads(a)
    def qloads():
        for qb in range(4):
            for ds in range(4):
                a(f"buffer_load_dwordx4 a[{Q_(qb,ds)}:{Q_(qb,ds)+3}], v{V_QOFF}, s[{S_Q}:{S_Q+3}], s{S_ROW+qb} offen offset:{64*ds}")
    srd(a, S_WS, 90, 0x10000000)
    srd(a, S_Q, 92, 0x1000000)
    srd(a, S_OUT, 30, 0x1000000)
    srd(a, S_DBG, 88, 256)
    deq_lane_v(a)
    a(f"v_lshlrev_b32 v{V_L16}, 4, v{V_T+1}")
    a("s_and_b32 s35, s34, 3")
    a("s_lshl_b32 s36, s33, 2")
    a("s_add_u32 s35, s35, s36")
    a("s_lshr_b32 s36, s34, 2")
    a("s_lshl_b32 s35, s35, 11")
    a("s_lshl_b32 s36, s36, 8")
    a("s_add_u32 s35, s35, s36")
    a("s_lshl_b32 s36, s32, 6")
    a("s_add_u32 s35, s35, s36")
    a("s_lshl_b32 s35, s35, 8")
    a("s_add_u32 s36, s35, 0x1000")
    a("s_add_u32 s37, s35, 0x2000")
    a("s_add_u32 s38, s35, 0x3000")
    a(f"s_lshl_b32 s{S_HB}, s33, 21")
    a(f"s_lshl_b32 s{S_W8K}, s32, 13")
    a(f"s_mov_b32 s{S_MASK}, 0xffff0000")
    a(f"s_mov_b32 s{S_CS}, {f32bits(math.log2(math.e) / math.sqrt(128.0)):#x}")
    a(f"s_mov_b32 s{S_CS+1}, s{S_CS}")
    a(f"s_mov_b32 s{S_FLAG}, 0")
    a(f"s_mov_b32 s{S_HELPED}, 0")
    deq_outoffs(a)
    a(f"v_lshlrev_b32 v{V_QOFF}, 8, v6")
    a(f"v_lshl_add_u32 v{V_QOFF}, v7, 4, v{V_QOFF}")
    if "lateq" not in OPT:
        qloads()
    a(f"s_add_u32 s39, s{S_HB}, s{S_W8K}")
    a(f"v_add_u32 v{V_DMA0}, s39, v{V_L16}")
    a(f"v_add_u32 v{V_DMA1}, 0x1000, v{V_DMA0}")
    a("s_lshl_b32 s39, s33, 5")
    a(f"v_add_u32 v{V_POLL}, s39, v8")
    a(f"v_subrev_u32 v{V_NEED}, s34, v8")
    a(f"v_add_u32 v{V_NEED}, -1, v{V_NEED}")
    a(f"v_and_b32 v{V_NEED}, 28, v{V_NEED}")
    a(f"s_xor_b32 s75, s{S_W8K}, 0x4000")
    a("s_lshr_b32 s75, s75, 1")
    a(f"v_add_u32 v{V_LW}, s75, v{V_L16}")
    a(f"v_mov_b32 v{V_AB}, v{V_L16}")
    for i in range(4):
        a(f"v_mov_b32 v{12+i}, 0")
    a(f"v_mov_b32 v{V_T}, 0x3f803f80")
    for i in range(4):
        a(f"v_accvgpr_write_b32 a{A_ONES+i}, v{V_T}")
    for i in range(8):
        a(f"v_mfma_f32_32x32x16_bf16 a[{16*i}:{16*i+15}], v[12:15], v[12:15], 0")
    a(f"v_mfma_f32_32x32x16_bf16 a[{L_(0)}:{L_(0)+15}], v[12:15], v[12:15], 0")
    if "tl" in OPT:
        a("s_memrealtime s[94:95]")
        a("s_waitcnt lgkmcnt(0)")
        a("v_mov_b32 v248, s94")
    deq_compute(a, "0", 0 if "lateq" in OPT else 16)
    if "tl" in OPT:
        a("s_memrealtime s[94:95]")
        a("s_waitcnt lgkmcnt(0)")
        a("v_mov_b32 v249, s94")
    if "lateq" in OPT:
        qloads()
        a("s_waitcnt vmcnt(16) lgkmcnt(0)")
    else:
        a("s_waitcnt vmcnt(0) lgkmcnt(0)")
    if "tl" in OPT:
        a("s_memrealtime s[94:95]")
        a("s_waitcnt lgkmcnt(0)")
        a("v_mov_b32 v250, s94")
    a("s_barrier")
    a("s_cmp_lg_u32 s32, 0")
    a("s_cbranch_scc1 L_pub_done")
    a(f"s_add_u32 s39, s39, s34")
    a(f"v_mov_b32 v{V_T}, 1")
    a(f"v_mov_b32 v{V_T+1}, s39")
    a("s_mov_b64 exec, 1")
    a(f"buffer_store_byte v{V_T}, v{V_T+1}, s[{S_DBG}:{S_DBG+3}], 0 offen sc1")
    a("s_mov_b64 exec, -1")
    a.label("L_pub_done")
    a.label("L_go")
    sc = Sched(a)
    for f in range(8):
        sc.read(f, V_AB, SEC_B + f * 1024)
    for k in range(64):
        sc.time += 1
        kvb, qb, ds = k >> 4, (k >> 2) & 3, k & 3
        f = 4 * (kvb & 1) + ds
        sc.need([f])
        d = S_(kvb, qb)
        c = "0" if ds == 0 else f"v[{d}:{d+3}]"
        a(f"{MF} v[{d}:{d+3}], a[{F_(f)}:{F_(f)+3}], a[{Q_(qb,ds)}:{Q_(qb,ds)+3}], {c}")
        if qb == 3 and kvb < 2:
            sc.read(f, V_AB, SEC_A + (kvb * 4 + ds) * 1024)
    a("s_nop 15")
    ms = [V_T + 2 * qb for qb in range(4)]
    for qb in range(4):
        rowmax(a, qb, ms[qb])
    xlane_max(a, ms)
    for qb in range(4):
        for r in range(4):
            a(f"v_sub_f32 v{NEGM+4*qb+r}, 0, v{ms[qb]}")
    for kvb in range(4):
        for qb in range(4):
            for r in range(4):
                s = S_(kvb, qb) + r
                a(f"v_add_f32 v{s}, v{s}, v{NEGM+4*qb}")
    for j in range(16, 64):
        a(exp_op(j, 1))
        if (j & 1) == 0 and j > 16:
            a(cvt_op(j - 1, 1))
    a("s_nop 0")
    a(cvt_op(63, 1))
    poll(a, "1", True, "s_waitcnt lgkmcnt(0)")
    if "tl" in OPT:
        a("s_memrealtime s[94:95]")
        a("s_waitcnt lgkmcnt(0)")
        a("v_mov_b32 v251, s94")
    a(f"s_lshl_b32 s{S_DOFF}, s34, 15")
    a(f"s_lshr_b32 s75, s{S_W8K}, 2")
    a(f"s_add_u32 m0, s75, {SEC_C}")
    a(f"s_sub_u32 s75, s75, s{S_W8K}")
    a(f"s_add_u32 s75, s75, {SEC_C}")
    a(f"s_add_u32 s75, s75, s{S_DOFF}")
    for i in range(2):
        a(f"buffer_load_dwordx4 v{V_DMA0}, s[{S_WS}:{S_WS+3}], s75 offen offset:{1024*i} lds")
    a(f"s_add_u32 s{S_DOFF}, s{S_DOFF}, 0x8000")
    a(f"s_and_b32 s{S_DOFF}, s{S_DOFF}, 0xfffff")
    a(f"s_add_u32 s{S_SLB}, s{S_W8K}, 0x8000")
    dma_tile(a)
    dma_tile(a)
    dma_tile(a)
    if "tl" in OPT:
        a("s_memrealtime s[74:75]")
        a("s_waitcnt lgkmcnt(0)")
    poll(a, "2", False, "s_waitcnt vmcnt(24) lgkmcnt(0)")
    for f in range(8):
        sc.read(f, V_AB, SEC_C + f * 1024)
    a("s_waitcnt lgkmcnt(0)")
    scratch = Asm()
    sc2 = Sched(scratch)
    for _ in range(3):
        gen_body(scratch, sc2, 0)
        gen_body(scratch, sc2, 1)
    state0 = (list(sc2.carry), [(f, sc2.time - t) for f, t in sc2.pending])
    sc2.a = a
    sc = sc2
    a(f"s_mov_b32 s{S_CNT}, 15")
    if "tl" in OPT:
        a("s_memrealtime s[76:77]")
        a("s_waitcnt lgkmcnt(0)")
    if "stamp" in OPT:
        a("s_memtime s[48:49]")
        a("s_memrealtime s[64:65]")
        a("s_waitcnt lgkmcnt(0)")
    a.raw(".p2align 6")
    a.label("L_loop")
    gen_body(a, sc, 0)
    gen_body(a, sc, 1)
    assert state0 == (list(sc.carry), [(f, sc.time - t) for f, t in sc.pending])
    a(f"s_sub_u32 s{S_CNT}, s{S_CNT}, 1")
    a(f"s_cmp_lg_u32 s{S_CNT}, 0")
    a("s_cbranch_scc1 L_loop")
    if "stamp" in OPT:
        a("s_memtime s[50:51]")
        a("s_memrealtime s[66:67]")
        a("s_waitcnt lgkmcnt(0)")
    if "tl" in OPT:
        a("s_memrealtime s[78:79]")
        a("s_waitcnt lgkmcnt(0)")
    gen_body(a, sc, 0)
    if "oldlast" in OPT:
        gen_body(a, sc, 1, last=True)
    else:
        if "tl" in OPT:
            a("s_memrealtime s[80:81]")
            a("s_waitcnt lgkmcnt(0)")
        gen_last(a, sc, 1)
    a.label("L_epi")
    a("s_waitcnt vmcnt(0)")
    a("s_nop 15")
    a(f"s_mov_b32 s{S_TMP}, {f32bits(2.0**100):#x}")
    for qb in range(4):
        a(f"v_accvgpr_read_b32 v{V_R+qb}, a{L_(qb)}")
    a(f"v_max3_f32 v{V_T}, v{V_R}, v{V_R+1}, v{V_R+2}")
    a(f"v_max_f32 v{V_T}, v{V_T}, v{V_R+3}")
    a(f"v_add_f32 v{V_T+1}, v{V_R}, v{V_R+1}")
    a(f"v_add_f32 v{V_T+2}, v{V_R+2}, v{V_R+3}")
    a(f"v_cmp_nle_f32 s[40:41], v{V_T}, s{S_TMP}")
    a(f"v_cmp_u_f32 s[42:43], v{V_T+1}, v{V_T+2}")
    for qb in range(4):
        a(f"v_rcp_f32 v{V_R+qb}, v{V_R+qb}")
    a(f"v_mov_b32 v{V_T}, 0")
    a(f"v_mov_b32 v{V_T+1}, 0")
    for qb in range(4):
        for db in range(8):
            o = O_(qb, db)
            for r in range(0, 4, 2):
                t = 64 + ((db * 4 + r) & 7)
                a(f"v_accvgpr_read_b32 v{t}, a{o+r}")
                a(f"v_accvgpr_read_b32 v{t+1}, a{o+r+1}")
                a(f"v_mul_f32 v{t}, v{t}, v{V_R+qb}")
                a(f"v_mul_f32 v{t+1}, v{t+1}, v{V_R+qb}")
                a(f"v_fma_f32 v{V_T}, v{t}, 0, v{V_T}")
                a(f"v_fma_f32 v{V_T+1}, v{t+1}, 0, v{V_T+1}")
                a(f"v_cvt_pk_bf16_f32 v{qb*16+db*2+(r>>1)}, v{t}, v{t+1}")
    a(f"v_cmp_u_f32 vcc, v{V_T}, v{V_T+1}")
    a("s_or_b64 s[40:41], s[40:41], s[42:43]")
    a("s_or_b64 vcc, vcc, s[40:41]")
    a(f"s_cmp_lg_u32 s{S_FLAG}, 0")
    a("s_cbranch_scc1 L_store")
    if "nofb" not in OPT:
        a("s_cbranch_vccnz L_fallback")
    a.label("L_store")
    if "tl" in OPT and "oldlast" in OPT:
        a("s_memrealtime s[80:81]")
    for qb in range(4):
        for e in range(4):
            r = qb * 16 + e * 4
            a(f"buffer_store_dwordx4 v[{r}:{r+3}], v{V_QOFF}, s[{S_OUT}:{S_OUT+3}], s{S_ROW+qb} offen offset:{e*64}")
    a.label("L_fin")
    if "tl" in OPT:
        a("s_waitcnt vmcnt(0)")
        a("s_memrealtime s[82:83]")
        a("s_waitcnt lgkmcnt(0)")
        a("s_lshl_b32 s84, s2, 7")
        a("s_lshl_b32 s85, s32, 5")
        a("s_add_u32 s84, s84, s85")
        a("s_add_u32 s84, s84, 0x4100000")
        for i, r in enumerate((100, 74, 76, 78, 80, 82)):
            a(f"v_mov_b32 v{70+i}, s{r}")
        a("v_mov_b32 v76, v251")
        a("v_mov_b32 v77, 0")
        a("v_mov_b32 v78, 0")
        a("s_mov_b64 exec, 1")
        a(f"buffer_store_dwordx4 v[70:73], v78, s[{S_WS}:{S_WS+3}], s84 offen")
        a(f"buffer_store_dwordx4 v[74:77], v78, s[{S_WS}:{S_WS+3}], s84 offen offset:16")
        if "dbgtl" in OPT:
            a("s_mov_b64 exec, -1")
            a("v_subrev_u32 v60, s100, v249")
            a("v_subrev_u32 v61, s100, v251")
            a("v_subrev_u32 v62, s100, v72")
            a("v_subrev_u32 v63, s100, v75")
            a("s_mov_b64 exec, 1")
            a("s_and_b32 s85, s2, 63")
            a("s_lshr_b32 s86, s2, 6")
            a("s_cmp_lg_u32 s85, s86")
            a("s_cbranch_scc1 L_nodbg")
            a("s_cmp_lg_u32 s32, 0")
            a("s_cbranch_scc1 L_nodbg")
            a("s_lshl_b32 s86, s86, 4")
            a(f"buffer_store_dwordx4 v[60:63], v78, s[{S_DBG}:{S_DBG+3}], s86 offen")
            a.label("L_nodbg")
        a("s_add_u32 s84, s84, 0x100000")
        a(f"buffer_store_dwordx4 v[248:251], v78, s[{S_WS}:{S_WS+3}], s84 offen")
        a(f"buffer_store_dwordx4 v[252:255], v78, s[{S_WS}:{S_WS+3}], s84 offen offset:16")
    if "stamp" in OPT:
        a("s_memtime s[52:53]")
        a("s_memrealtime s[54:55]")
        a("s_waitcnt lgkmcnt(0)")
        a("s_sub_u32 s52, s52, s44")
        a("s_sub_u32 s54, s54, s46")
        a("s_sub_u32 s50, s50, s48")
        a("s_sub_u32 s48, s48, s44")
        a("s_sub_u32 s66, s66, s64")
        a("s_sub_u32 s64, s64, s46")
        srd(a, 60, 56, 256)
        a("s_lshl_b32 s58, s2, 5")
        a("s_cmp_ge_u32 s2, 8")
        a("s_cbranch_scc1 L_done")
        a("s_cmp_lg_u32 s32, 0")
        a("s_cbranch_scc1 L_done")
        a("s_nop 4")
        a("v_mov_b32 v70, s52")
        a("v_mov_b32 v71, s54")
        a("v_mov_b32 v72, s50")
        a("v_mov_b32 v73, s48")
        a("v_mov_b32 v74, 0")
        a("s_mov_b64 exec, 1")
        a("v_mov_b32 v76, s66")
        a("v_mov_b32 v77, s64")
        a("v_mov_b32 v78, 0")
        a("v_mov_b32 v79, 0")
        a("buffer_store_dwordx4 v[70:73], v74, s[60:63], s58 offen")
        a("buffer_store_dwordx4 v[76:79], v74, s[60:63], s58 offen offset:16")
    a.label("L_done")
    a("s_endpgm")

    a.label("L_selfhelp")
    a("s_waitcnt vmcnt(0) lgkmcnt(0)")
    a("s_barrier")
    a(f"s_mov_b32 s{S_HELPED}, 1")
    a(f"s_mov_b32 s{S_TILE}, 0")
    a.label("L_sh_tile")
    a(f"v_mov_b32 v{V_LW}, {NSLOT*SLOTB}")
    deq_loads(a)
    deq_outoffs(a)
    deq_compute(a, "1")
    a("s_waitcnt vmcnt(0) lgkmcnt(0)")
    a(f"s_add_u32 s{S_TILE}, s{S_TILE}, 1")
    a(f"s_cmp_lt_u32 s{S_TILE}, 32")
    a("s_cbranch_scc1 L_sh_tile")
    a("s_barrier")
    a("buffer_inv sc1")
    a("s_waitcnt vmcnt(0)")
    a("s_barrier")
    a("s_branch L_go")

    a.label("L_fallback")
    a("s_waitcnt vmcnt(0)")
    a(f"s_mov_b32 s{S_FLAG}, 1")
    for i in range(128):
        a(f"v_accvgpr_write_b32 a{i}, 0")
    for i in range(16):
        a(f"v_accvgpr_write_b32 a{L_(0)+i}, 0")
    for qb in range(4):
        a(f"v_mov_b32 v{V_M+qb}, {f32bits(-3.0e38):#x}")
    a("s_mov_b32 s39, 0")
    a(f"s_mov_b32 s{S_CNT}, 32")
    a.label("L_fb_loop")

    def fb_load8(delta):
        a(f"s_add_u32 s{S_DOFF}, s39, {delta & 0xffffffff:#x}")
        a(f"s_and_b32 s{S_DOFF}, s{S_DOFF}, 0xfffff")
        a(f"s_add_u32 s{S_DOFF}, s{S_DOFF}, s{S_HB}")
        for q4 in range(2):
            for i in range(4):
                f = q4 * 4 + i
                a(f"buffer_load_dwordx4 a[{F_(f)}:{F_(f)+3}], v{V_L16}, s[{S_WS}:{S_WS+3}], s{S_DOFF} offen offset:{1024*i}")
            a(f"s_add_u32 s{S_DOFF}, s{S_DOFF}, 0x1000")
        a("s_waitcnt vmcnt(0)")
    for half in range(2):
        fb_load8(-8192 if half == 0 else 0)
        for kv2 in range(2):
            kvb = half * 2 + kv2
            for qb in range(4):
                d = S_(kvb, qb)
                for ds in range(4):
                    f = kv2 * 4 + ds
                    c = "0" if ds == 0 else f"v[{d}:{d+3}]"
                    a(f"{MF} v[{d}:{d+3}], a[{F_(f)}:{F_(f)+3}], a[{Q_(qb,ds)}:{Q_(qb,ds)+3}], {c}")
        a("s_nop 15")
    for qb in range(4):
        rowmax(a, qb, ms[qb], extra=V_M + qb)
    xlane_max(a, ms)
    for qb in range(4):
        m = ms[qb]
        al = m + 1
        a(f"v_sub_f32 v{al}, v{V_M+qb}, v{m}")
        a(f"v_exp_f32 v{al}, v{al}")
        a(f"v_mov_b32 v{V_M+qb}, v{m}")
        regs = [O_(qb, db) + r for db in range(8) for r in range(4)] + [L_(qb) + r for r in range(4)]
        for o in regs:
            a(f"v_accvgpr_read_b32 v{V_T+8}, a{o}")
            a(f"v_mul_f32 v{V_T+8}, v{V_T+8}, v{al}")
            a(f"v_accvgpr_write_b32 a{o}, v{V_T+8}")
    for kvb in range(4):
        for qb in range(4):
            for r in range(4):
                s = S_(kvb, qb) + r
                a(f"v_sub_f32 v{s}, v{s}, v{ms[qb]}")
    for s in range(64):
        a(f"v_exp_f32 v{s}, v{s}")
    a("s_nop 0")
    for kvb in range(4):
        for qb in range(4):
            for r in range(0, 4, 2):
                s = S_(kvb, qb) + r
                p = P_(0, kvb >> 1, qb) + (kvb & 1) * 2 + (r >> 1)
                a(f"v_cvt_pk_bf16_f32 v{p}, v{s}, v{s+1}")
    a("s_nop 1")
    for qb in range(4):
        for s in range(2):
            p = P_(0, s, qb)
            a(f"{MF} a[{L_(qb)}:{L_(qb)+3}], a[{A_ONES}:{A_ONES+3}], v[{p}:{p+3}], a[{L_(qb)}:{L_(qb)+3}]")
    for half in range(2):
        fb_load8(SLOTB + SEC_B + half * 8192)
        for f in range(8):
            fv = half * 8 + f
            db, s = fv >> 1, fv & 1
            for qb in range(4):
                p = P_(0, s, qb)
                o = O_(qb, db)
                a(f"{MF} a[{o}:{o+3}], a[{F_(f)}:{F_(f)+3}], v[{p}:{p+3}], a[{o}:{o+3}]")
        a("s_nop 15")
    a(f"s_add_u32 s39, s39, {SLOTB}")
    a(f"s_sub_u32 s{S_CNT}, s{S_CNT}, 1")
    a(f"s_cmp_lg_u32 s{S_CNT}, 0")
    a("s_cbranch_scc1 L_fb_loop")
    a("s_branch L_epi")


def descriptor(a, name, vgpr, sgpr, accum):
    a.raw(f".amdhsa_kernel {name}")
    a.raw(f"  .amdhsa_next_free_vgpr {vgpr}")
    a.raw(f"  .amdhsa_next_free_sgpr {sgpr}")
    a.raw(f"  .amdhsa_accum_offset {accum}")
    a.raw("  .amdhsa_group_segment_fixed_size 0")
    a.raw("  .amdhsa_kernarg_size 80")
    a.raw("  .amdhsa_user_sgpr_count 2")
    a.raw("  .amdhsa_user_sgpr_kernarg_segment_ptr 1")
    a.raw("  .amdhsa_system_sgpr_workgroup_id_x 1")
    a.raw(".end_amdhsa_kernel")


def main():
    out = sys.argv[1] if len(sys.argv) > 1 else OUT
    a = Asm()
    a.raw(HEADER.rstrip("\n"))
    if "list" in OPT:
        a.raw(f"; @launch kernel={NAME}_kernel grid=(256,1,1) block=(256,1,1) lds={NSLOT*SLOTB+8192}")
    else:
        a.raw(f"; @launch grid=(256,1,1) block=(256,1,1) lds={NSLOT*SLOTB+8192}")
    a.raw('.amdgcn_target "amdgcn-amd-amdhsa--gfx950"')
    a.raw(".text")
    gen_main(a)
    a.raw('.section .rodata,"a"')
    a.raw(".p2align 6")
    descriptor(a, NAME + "_kernel", 512, 102, 256)
    open(out, "w").write(a.text())


if __name__ == "__main__":
    main()
```

```python
import math
import os
import struct
import sys

OPT = set(os.environ.get("GENOPT", "").split(",")) | {"noinv", "ntst", "dmasc1"}
OPT -= set(os.environ.get("GENNOT", "").split(","))
NAME = "standalone__kv_cache_quant_int4_int2_kv_with_per_channel_or_per_token_scales__prompt"
OUT = f"cdna_kernels/{NAME}.s"

HEADER = """; Kernarg layout for this problem (80 bytes, ptrs only, base s[0:1]):
;   offset   0: d_in[0] q  shape=(1, 32, 2048, 128) dtype=bfloat16 strides=(16777216, 524288, 256, 2) contiguous=True
;   offset   8: d_in[1] qk  shape=(1, 8, 2048, 128) dtype=int32 strides=(8388608, 1048576, 512, 4) contiguous=True
;   offset  16: d_in[2] qv  shape=(1, 8, 2048, 128) dtype=int32 strides=(8388608, 1048576, 512, 4) contiguous=True
;   offset  24: d_in[3] k_scales  shape=(1, 8, 32, 128) dtype=bfloat16 strides=(65536, 8192, 256, 2) contiguous=True
;   offset  32: d_in[4] k_zeros  shape=(1, 8, 32, 128) dtype=bfloat16 strides=(65536, 8192, 256, 2) contiguous=True
;   offset  40: d_in[5] v_scales  shape=(1, 8, 2048, 1) dtype=bfloat16 strides=(32768, 4096, 2, 2) contiguous=True
;   offset  48: d_in[6] v_zeros  shape=(1, 8, 2048, 1) dtype=bfloat16 strides=(32768, 4096, 2, 2) contiguous=True
;
; Phase 1: it dequantises its own 64-token K/V tile (same bf16 rounding steps as the reference; the
;   softmax scale * log2(e) is folded into K) into d_ws as ready-to-use MFMA fragments (write-through
;   need (agent-scope loads); if a producer never shows up they dequantise the whole head themselves.
; Phase 2: flash attention for (q head, 256 query rows), 4 waves x 64 rows, kv tiles visited
;   through the MFMA C operand), P = exp2(S^T), O^T += V^T P^T, row sums via a ones-operand MFMA.
;   If a later tile makes that reference max unsafe (row sum too large / non finite output) the wave
"""


def f32bits(x):
    return struct.unpack("<I", struct.pack("<f", x))[0]


class Asm:
    def __init__(self):
        self.lines = []

    def __call__(self, s):
        if "nt" in OPT and s.startswith("buffer_load_dwordx4") and " lds" not in s and ("s[44:47]" in s or "s[48:51]" in s or "s[8:11]" in s):
            s += " nt"
        if "dmasc1" in OPT and s.startswith("buffer_load_dwordx4") and "s[4:7]" in s:
            s = s.replace(" lds", " sc1 lds") if " lds" in s else s + " sc1"
        if "ntst" in OPT and s.startswith("buffer_store_dwordx4") and "s[12:15]" in s:
            s += " nt"
        self.lines.append("    " + s)

    def label(self, s):
        self.lines.append(s + ":")

    def raw(self, s):
        self.lines.append(s)

    def text(self):
        return "\n".join(self.lines) + "\n"


def srd(a, d, base, nbytes):
    a(f"s_mov_b32 s{d}, s{base}")
    a(f"s_and_b32 s{d+1}, s{base+1}, 0xffff")
    a(f"s_mov_b32 s{d+2}, {nbytes:#x}")
    a(f"s_mov_b32 s{d+3}, 0x00020000")


S_QK, S_QV, S_KS, S_KZ, S_VS, S_VZ, S_DBG = 44, 48, 52, 56, 60, 64, 68
S_TILE, S_TASK = 72, 73
S_MASK, S_CS = 84, 86
S_I8, S_I4, S_MODE, S_PCNT, S_HELPED = 88, 89, 90, 91, 92
KD, KSC, KZR = 16, 48, 64
WW, ZZ, SS, TT, OO = 80, 88, 96, 104, 108
VD, VRAW, VUN = 128, 192, 200
V_KIN, V_KSO, V_VIN, V_VSO, V_VOUT, V_LW, V_NEED, V_VST, V_VRD = 240, 241, 242, 243, 244, 245, 246, 247, 191


def deq_lane_k(a, lane):
    a(f"v_and_b32 v6, 15, v{lane}")
    a(f"v_lshrrev_b32 v7, 4, v{lane}")
    a(f"v_lshlrev_b32 v{V_KIN}, 9, v6")
    a(f"v_lshl_add_u32 v{V_KIN}, v7, 5, v{V_KIN}")
    a(f"v_lshlrev_b32 v{V_KSO}, 4, v7")
    a(f"v_and_b32 v8, 31, v{lane}")
    a(f"v_lshrrev_b32 v9, 5, v{lane}")
    a(f"v_lshlrev_b32 v{V_VIN}, 11, v9")
    a(f"v_lshl_add_u32 v{V_VIN}, v8, 4, v{V_VIN}")
    a(f"v_lshlrev_b32 v{V_VSO}, 3, v9")


def deq_lane_v(a):
    a("v_lshrrev_b32 v10, 3, v8")
    a(f"v_lshlrev_b32 v{V_VOUT}, 12, v10")
    a("v_and_b32 v10, 1, v8")
    a(f"v_lshl_add_u32 v{V_VOUT}, v10, 11, v{V_VOUT}")
    a("v_bfe_u32 v10, v8, 1, 2")
    a(f"v_lshl_add_u32 v{V_VOUT}, v10, 6, v{V_VOUT}")
    a(f"v_lshl_add_u32 v{V_VOUT}, v9, 8, v{V_VOUT}")
    a(f"v_lshlrev_b32 v{V_VST}, 11, v9")
    a(f"v_lshl_add_u32 v{V_VST}, v8, 4, v{V_VST}")
    a("s_lshl_b32 s75, s78, 10")
    a("s_lshl_b32 s76, s79, 9")
    a("s_add_u32 s75, s75, s76")
    a(f"s_add_u32 s75, s75, {32768 + 8192}")
    a(f"v_add_u32 v{V_VOUT}, s75, v{V_VOUT}")
    a(f"v_add_u32 v{V_VRD}, s75, v{V_VST}")


def deq_loads(a):
    a("s_lshl_b32 s75, s33, 5")
    a(f"s_add_u32 s75, s75, s{S_TILE}")
    a("s_lshl_b32 s76, s75, 8")
    a("s_lshl_b32 s77, s75, 6")
    a(f"s_lshl_b32 s74, s{S_TASK}, 4")
    a("s_add_u32 s74, s74, s77")
    a("s_lshl_b32 s74, s74, 9")
    for i in range(4):
        a(f"buffer_load_dwordx4 v[{KD+8*i}:{KD+8*i+3}], v{V_KIN}, s[{S_QK}:{S_QK+3}], s74 offen offset:{128*i}")
        a(f"buffer_load_dwordx4 v[{KD+8*i+4}:{KD+8*i+7}], v{V_KIN}, s[{S_QK}:{S_QK+3}], s74 offen offset:{128*i+16}")
    for i in range(4):
        a(f"buffer_load_dwordx4 v[{KSC+4*i}:{KSC+4*i+3}], v{V_KSO}, s[{S_KS}:{S_KS+3}], s76 offen offset:{64*i}")
        a(f"buffer_load_dwordx4 v[{KZR+4*i}:{KZR+4*i+3}], v{V_KSO}, s[{S_KZ}:{S_KZ+3}], s76 offen offset:{64*i}")
    a(f"s_lshr_b32 s78, s{S_TASK}, 1")
    a(f"s_and_b32 s79, s{S_TASK}, 1")
    a("s_lshl_b32 s75, s78, 5")
    a("s_add_u32 s77, s77, s75")
    a("s_lshl_b32 s75, s79, 3")
    a("s_add_u32 s77, s77, s75")
    a("s_lshl_b32 s80, s77, 1")
    a("s_lshl_b32 s77, s77, 9")
    a("s_add_u32 s81, s77, 8192")
    for j in range(8):
        so = "s77" if j < 4 else "s81"
        a(f"buffer_load_dwordx4 v[{VD+4*j}:{VD+4*j+3}], v{V_VIN}, s[{S_QV}:{S_QV+3}], {so} offen offset:{512*(j&3)}")
    a(f"buffer_load_dwordx2 v[{VRAW}:{VRAW+1}], v{V_VSO}, s[{S_VS}:{S_VS+3}], s80 offen")
    a(f"buffer_load_dwordx2 v[{VRAW+2}:{VRAW+3}], v{V_VSO}, s[{S_VS}:{S_VS+3}], s80 offen offset:32")
    a(f"buffer_load_dwordx2 v[{VRAW+4}:{VRAW+5}], v{V_VSO}, s[{S_VZ}:{S_VZ+3}], s80 offen")
    a(f"buffer_load_dwordx2 v[{VRAW+6}:{VRAW+7}], v{V_VSO}, s[{S_VZ}:{S_VZ+3}], s80 offen offset:32")


def deq_outoffs(a):
    a(f"s_lshl_b32 s82, s{S_TILE}, 15")
    a("s_add_u32 s83, s82, 0x8000")
    a("s_and_b32 s83, s83, 0xfffff")
    a("s_add_u32 s83, s83, 8192")
    a("s_lshl_b32 s75, s78, 10")
    a("s_add_u32 s83, s83, s75")
    a("s_lshl_b32 s75, s79, 9")
    a("s_add_u32 s83, s83, s75")
    a(f"s_add_u32 s83, s83, s{S_HB}")
    a(f"s_lshl_b32 s75, s{S_TASK}, 12")
    a("s_add_u32 s82, s82, s75")
    a("s_sub_u32 s82, s82, 8192")
    a("s_and_b32 s82, s82, 0xfffff")
    a(f"s_add_u32 s82, s82, s{S_HB}")


def rnd_unpack(a):
    for p in range(4):
        a(f"v_cvt_pk_bf16_f32 v{TT+p}, v{WW+2*p}, v{WW+2*p+1}")
    for p in range(4):
        a(f"v_lshlrev_b32 v{WW+2*p}, 16, v{TT+p}")
        a(f"v_and_b32 v{WW+2*p+1}, s{S_MASK}, v{TT+p}")


def deq_compute(a, tag, extra=0):
    a(f"s_waitcnt vmcnt({12+extra})")
    a(f"s_mov_b32 s{S_I8}, 0")
    a(f"s_mov_b32 s{S_I4}, 0")
    a.label(f"L_dk{tag}")
    a(f"s_set_gpr_idx_on s{S_I8}, gpr_idx(SRC0)")
    a("s_nop 1")
    for k in range(8):
        a(f"v_cvt_f32_i32 v{WW+k}, v{KD+k}")
    a(f"s_set_gpr_idx_idx s{S_I4}")
    a("s_set_gpr_idx_mode gpr_idx(SRC1)")
    a("s_nop 1")
    for p in range(4):
        a(f"v_lshlrev_b32 v{ZZ+2*p}, 16, v{KZR+p}")
        a(f"v_and_b32 v{ZZ+2*p+1}, s{S_MASK}, v{KZR+p}")
        a(f"v_lshlrev_b32 v{SS+2*p}, 16, v{KSC+p}")
        a(f"v_and_b32 v{SS+2*p+1}, s{S_MASK}, v{KSC+p}")
    a("s_set_gpr_idx_off")
    a("s_nop 1")
    for p in range(4):
        a(f"v_pk_add_f32 v[{WW+2*p}:{WW+2*p+1}], v[{WW+2*p}:{WW+2*p+1}], v[{ZZ+2*p}:{ZZ+2*p+1}] neg_lo:[0,1] neg_hi:[0,1]")
    rnd_unpack(a)
    for p in range(4):
        a(f"v_pk_mul_f32 v[{WW+2*p}:{WW+2*p+1}], v[{WW+2*p}:{WW+2*p+1}], v[{SS+2*p}:{SS+2*p+1}]")
    rnd_unpack(a)
    for p in range(4):
        a(f"v_pk_mul_f32 v[{WW+2*p}:{WW+2*p+1}], v[{WW+2*p}:{WW+2*p+1}], s[{S_CS}:{S_CS+1}]")
    for p in range(4):
        a(f"v_cvt_pk_bf16_f32 v{OO+p}, v{WW+2*p}, v{WW+2*p+1}")
    a(f"buffer_store_dwordx4 v[{OO}:{OO+3}], v{V_L16}, s[{S_WS}:{S_WS+3}], s82 offen sc1")
    a(f"ds_write_b128 v{V_LW}, v[{OO}:{OO+3}]")
    a(f"v_add_u32 v{V_LW}, 0x400, v{V_LW}")
    a("s_add_u32 s82, s82, 0x400")
    a(f"s_add_u32 s{S_I8}, s{S_I8}, 8")
    a(f"s_add_u32 s{S_I4}, s{S_I4}, 4")
    a(f"s_cmp_lt_u32 s{S_I4}, 16")
    a(f"s_cbranch_scc1 L_dk{tag}")
    a(f"s_waitcnt vmcnt({4+extra})")
    for p in range(4):
        a(f"v_lshlrev_b32 v{SS+2*p}, 16, v{VRAW+p}")
        a(f"v_and_b32 v{SS+2*p+1}, s{S_MASK}, v{VRAW+p}")
        a(f"v_lshlrev_b32 v{ZZ+2*p}, 16, v{VRAW+4+p}")
        a(f"v_and_b32 v{ZZ+2*p+1}, s{S_MASK}, v{VRAW+4+p}")
    a(f"s_mov_b32 s{S_I4}, 0")
    a.label(f"L_dv{tag}")
    a(f"s_set_gpr_idx_on s{S_I4}, gpr_idx(SRC0)")
    a("s_nop 1")
    for j in range(8):
        a(f"v_cvt_f32_i32 v{WW+j}, v{VD+4*j}")
    a("s_set_gpr_idx_off")
    a("s_nop 1")
    for p in range(4):
        a(f"v_pk_add_f32 v[{WW+2*p}:{WW+2*p+1}], v[{WW+2*p}:{WW+2*p+1}], v[{ZZ+2*p}:{ZZ+2*p+1}] neg_lo:[0,1] neg_hi:[0,1]")
    rnd_unpack(a)
    for p in range(4):
        a(f"v_pk_mul_f32 v[{WW+2*p}:{WW+2*p+1}], v[{WW+2*p}:{WW+2*p+1}], v[{SS+2*p}:{SS+2*p+1}]")
    for p in range(4):
        a(f"v_cvt_pk_bf16_f32 v{OO+p}, v{WW+2*p}, v{WW+2*p+1}")
    a(f"ds_write_b128 v{V_VOUT}, v[{OO}:{OO+3}]")
    a(f"v_add_u32 v{V_VOUT}, 16, v{V_VOUT}")
    a(f"s_add_u32 s{S_I4}, s{S_I4}, 1")
    a(f"s_cmp_lt_u32 s{S_I4}, 4")
    a(f"s_cbranch_scc1 L_dv{tag}")
    a(f"v_add_u32 v{V_VOUT}, -64, v{V_VOUT}")
    for k in range(4):
        a(f"ds_read_b128 v[{KD+4*k}:{KD+4*k+3}], v{V_VRD} offset:{4096*k}")
    for k in range(4):
        a(f"s_waitcnt lgkmcnt({3-k})")
        a(f"buffer_store_dwordx4 v[{KD+4*k}:{KD+4*k+3}], v{V_VST}, s[{S_WS}:{S_WS+3}], s83 offen sc1")
        if k < 3:
            a("s_add_u32 s83, s83, 0x1000")


def poll(a, tag, masked, pre_barrier):
    a(f"v_mov_b32 v{V_T+2}, {NSLOT*SLOTB + 4096 + 64 * int(tag)}")
    a("s_cmp_lg_u32 s32, 0")
    a(f"s_cbranch_scc1 L_pw{tag}")
    a(f"s_mov_b32 s{S_MODE}, 1")
    a(f"s_cmp_lg_u32 s{S_HELPED}, 0")
    a(f"s_cbranch_scc1 L_pok{tag}")
    if not masked:
        a("s_cmp_eq_u64 s[40:41], 0")
        a(f"s_cbranch_scc1 L_pok{tag}")
    a(f"s_mov_b32 s{S_PCNT}, 0")
    a.label(f"L_poll{tag}")
    a(f"buffer_load_ubyte v{V_T}, v{V_POLL}, s[{S_DBG}:{S_DBG+3}], 0 offen sc1")
    a(f"s_waitcnt vmcnt(0)")
    if masked:
        a(f"v_cmp_eq_u32 s[40:41], 0, v{V_T}")
        a(f"v_or_b32 v{V_T}, v{V_T}, v{V_NEED}")
    a(f"v_cmp_eq_u32 vcc, 0, v{V_T}")
    a(f"s_add_u32 s{S_PCNT}, s{S_PCNT}, 1")
    a("s_nop 3")
    a(f"s_cbranch_vccz L_pdone{tag}")
    a(f"s_sleep {SLEEP}")
    a(f"s_cmp_lt_u32 s{S_PCNT}, {0 if ('selfhelp' + tag) in OPT else 6000}")
    a(f"s_cbranch_scc1 L_poll{tag}")
    a(f"s_mov_b32 s{S_MODE}, 2")
    a.label(f"L_pdone{tag}")
    if "noinv" not in OPT:
        a("buffer_inv sc1")
        a("s_waitcnt vmcnt(0)")
    a.label(f"L_pok{tag}")
    a(f"v_mov_b32 v{V_T}, s{S_MODE}")
    a(f"ds_write_b32 v{V_T+2}, v{V_T}")
    a.label(f"L_pw{tag}")
    a(pre_barrier)
    a("s_barrier")
    a(f"ds_read_b32 v{V_T}, v{V_T+2}")
    a("s_waitcnt lgkmcnt(0)")
    a(f"v_readfirstlane_b32 s{S_MODE}, v{V_T}")
    a("s_nop 3")
    a(f"s_cmp_eq_u32 s{S_MODE}, 2")
    a("s_cbranch_scc1 L_selfhelp")


SLEEP = int(os.environ.get("SLEEP", "4"))


def O_(qb, db):
    return (qb * 8 + db) * 4


def Q_(qb, ds):
    return 128 + (qb * 4 + ds) * 4


def F_(i):
    return 192 + 4 * i


def L_(qb):
    return 224 + 4 * qb


A_ONES = 240


def S_(kvb, qb):
    return (kvb * 4 + qb) * 4


NEGM = 64
PB = 96


def P_(par, s, qb):
    return PB + par * 32 + (s * 4 + qb) * 4


V_L16 = 164
V_AB = 165
V_DMA0 = 168
V_DMA1 = 169
V_T = 170
V_QOFF = 180
V_M = 182
V_R = 186
V_POLL = 190

S_WS, S_Q, S_OUT = 4, 8, 12
S_CNT = 16
S_DOFF = 17
S_SLB = 19
S_TMP = 20
S_HB = 22
S_W8K = 23
S_FLAG = 24
S_ROW = 35

NSLOT = 4
SLOTB = 32768
MF = "v_mfma_f32_16x16x32_bf16"
SEC_A, SEC_B, SEC_C = 0, 8192, 24576


class Sched:
    def __init__(self, a, lead=6):
        self.a = a
        self.pending = []
        self.time = 0
        self.lead = lead
        self.carry = [-1]

    def read(self, frag, addr_v, off):
        if "nord" not in OPT:
            self.a(f"ds_read_b128 a[{F_(frag)}:{F_(frag)+3}], v{addr_v} offset:{off}")
        self.pending.append((frag, self.time))

    def need(self, frags, extra=""):
        idx = None
        for i, (f, t) in enumerate(self.pending):
            if f in frags:
                idx = i
        if idx is None:
            return False
        while idx + 1 < len(self.pending) and self.time - self.pending[idx + 1][1] >= self.lead:
            idx += 1
        n = len(self.pending) - 1 - idx
        self.a(f"s_waitcnt lgkmcnt({n})")
        self.pending = self.pending[idx + 1:]
        return True


def elem(j, par_cur):
    if j < 16:
        e, par = 48 + j, par_cur
    else:
        e, par = j - 16, par_cur ^ 1
    B, r = e >> 2, e & 3
    kvb, qb = B >> 2, B & 3
    return S_(kvb, qb) + r, P_(par, kvb >> 1, qb) + (kvb & 1) * 2 + (r >> 1)


def exp_op(j, par):
    s, _ = elem(j, par)
    return f"v_exp_f32 v{s}, v{s}"


def cvt_op(j, par):
    if j < 0:
        j, par = j + 64, par ^ 1
    s, p = elem(j, par)
    return f"v_cvt_pk_bf16_f32 v{p}, v{s-1}, v{s}"


def dma_op(i):
    v = V_DMA0 if i < 4 else V_DMA1
    return f"buffer_load_dwordx4 v{v}, s[{S_WS}:{S_WS+3}], s{S_DOFF} offen offset:{1024*(i&3)} lds"


def dma_tile(a):
    for i in range(8):
        if i == 0:
            a(f"s_mov_b32 m0, s{S_SLB}")
            a("s_nop 0")
        if i == 4:
            a(f"s_add_u32 m0, s{S_SLB}, 0x1000")
            a("s_nop 0")
        a(dma_op(i))
    a(f"s_add_u32 s{S_DOFF}, s{S_DOFF}, 0x8000")
    a(f"s_and_b32 s{S_DOFF}, s{S_DOFF}, 0xfffff")
    a(f"s_add_u32 s{S_SLB}, s{S_SLB}, 0x8000")
    a(f"s_and_b32 s{S_SLB}, s{S_SLB}, 0x1ffff")


NS = 136
PV0 = 72
BAR = 11
DMA_SLOTS = [21, 37, 53, 69, 85, 101, 117, 131]
FREE_EVEN = {10, 46, 90, 134}
CVQ_MAX = 5


def mfma_info(k):
    if k < 64:
        kvb, qb, ds = k >> 4, (k >> 2) & 3, k & 3
        return ("qk", (kvb, qb, ds), 4 * (kvb & 1) + ds)
    if k < PV0:
        return ("sum", ((k - 64) >> 1, (k - 64) & 1), None)
    i = k - PV0
    db, qb, s = i >> 3, (i >> 1) & 3, i & 1
    return ("pv", (db, qb, s), (2 * db + s) & 7)


def gen_body(a, sc, par, last=False, dma=True):
    ubase = ((par ^ 1)) * SLOTB
    exq = list(range(16 if last else 64))
    cvq = list(sc.carry)
    rdq = []
    misc = []
    if not last:
        misc.append((13, [f"s_mov_b32 m0, s{S_SLB}"]))
        misc.append((70, [f"s_add_u32 m0, s{S_SLB}, 0x1000"]))
        misc.append((132, [f"s_add_u32 s{S_DOFF}, s{S_DOFF}, 0x8000"]))
        misc.append((132, [f"s_and_b32 s{S_DOFF}, s{S_DOFF}, 0xfffff"]))
        misc.append((132, [f"s_add_u32 s{S_SLB}, s{S_SLB}, 0x8000"]))
        misc.append((132, [f"s_and_b32 s{S_SLB}, s{S_SLB}, 0x1ffff"]))
    dmai = 0
    pend_cv = []
    for k in range(NS):
        sc.time += 1
        kind, prm, f = mfma_info(k)
        units = 2
        if f is not None and not (last and kind == "qk"):
            assert all(r[0] != f for r in rdq), (k, f, rdq)
        if kind == "qk":
            kvb, qb, ds = prm
            if not last:
                if sc.need([f]):
                    pass
                d = S_(kvb, qb)
                c = f"v[{NEGM+4*qb}:{NEGM+4*qb+3}]" if ds == 0 else f"v[{d}:{d+3}]"
                a(f"{MF} v[{d}:{d+3}], a[{F_(f)}:{F_(f)+3}], a[{Q_(qb,ds)}:{Q_(qb,ds)+3}], {c}")
            if qb == 3:
                if kvb < 2:
                    if not last:
                        rdq.append((f, V_AB, ubase + SEC_A + (kvb * 4 + ds) * 1024))
                else:
                    rdq.append((f, V_AB, ubase + SEC_B + f * 1024))
        elif kind == "sum":
            qb, s = prm
            p = P_(par, s, qb)
            a(f"{MF} a[{L_(qb)}:{L_(qb)+3}], a[{A_ONES}:{A_ONES+3}], v[{p}:{p+3}], a[{L_(qb)}:{L_(qb)+3}]")
        else:
            db, qb, s = prm
            fv = 2 * db + s
            sc.need([f])
            p = P_(par, s, qb)
            o = O_(qb, db)
            a(f"{MF} a[{o}:{o+3}], a[{F_(f)}:{F_(f)+3}], v[{p}:{p+3}], a[{o}:{o+3}]")
            if qb == 3:
                if fv < 8:
                    rdq.append((f, V_AB, ubase + SEC_B + (fv + 8) * 1024))
                elif not last:
                    rdq.append((f, V_AB, ubase + SEC_C + (fv - 8) * 1024))
        cvq += pend_cv
        pend_cv = []
        if k == BAR:
            if last:
                a("s_waitcnt vmcnt(0) lgkmcnt(0)")
            else:
                a("s_waitcnt vmcnt(16) lgkmcnt(0)")
            sc.pending = []
            if "nobar" not in OPT:
                a("s_barrier")
            continue
        if k in DMA_SLOTS and not last:
            if "nodma" not in OPT:
                a(dma_op(dmai))
            dmai += 1
            continue
        if (k & 1) == 0 and k not in FREE_EVEN:
            if exq:
                j = exq.pop(0)
                if "nosm" not in OPT and "noexp" not in OPT:
                    a(exp_op(j, par))
                if j & 1:
                    pend_cv.append(j)
                continue
        nxt = []
        for kk in (k + 1, k + 2):
            if kk < NS:
                kd, _, ff = mfma_info(kk)
                if ff is not None and not (last and kd == "qk"):
                    nxt.append(ff)
        light = 1
        if sc.need(nxt):
            light -= 1
        did_read = False
        if rdq and k > BAR:
            sc.read(*rdq.pop(0))
            did_read = True
        if did_read and not (len(cvq) >= CVQ_MAX and light > 0):
            pass
        elif cvq:
            if did_read:
                light -= 1
            j = cvq.pop(0)
            if last and k < 64:
                a("s_nop 0")
            if "nosm" not in OPT and "nocvt" not in OPT:
                a(cvt_op(j, par))
        else:
            light += 1
        while light > 0 and misc and misc[0][0] <= k:
            for t in misc.pop(0)[1]:
                a(t)
            light -= 1
    cvq += pend_cv
    if last:
        assert not cvq
    assert all(j >= 40 for j in cvq), cvq
    sc.carry = [j - 64 for j in cvq]
    for r in rdq:
        sc.read(*r)
    for m in misc:
        for t in m[1]:
            a(t)
    assert not exq
    if par == 0 and not last:
        a(f"v_xor_b32 v{V_AB}, 0x10000, v{V_AB}")


def gen_last(a, sc, par):
    ubase = (par ^ 1) * SLOTB
    a("s_waitcnt vmcnt(0) lgkmcnt(0)")
    a("s_barrier")
    sc.pending = []
    for db in range(8):
        sc.read(db, V_AB, ubase + SEC_B + (2 * db) * 1024)
    ops = [cvt_op(j, par) for j in sc.carry]
    for j in range(16):
        ops.append(exp_op(j, par))
        if j >= 2 and (j & 1) == 0:
            ops.append(cvt_op(j - 1, par))
    ops.append("s_nop 0")
    ops.append(cvt_op(15, par))
    npre = len(sc.carry) + 4
    for op in ops[:npre]:
        a(op)
    ops = ops[npre:]
    sc.time += 8
    for db in range(8):
        for qb in range(4):
            sc.time += 1
            sc.need([db])
            p = P_(par, 0, qb)
            o = O_(qb, db)
            a(f"{MF} a[{o}:{o+3}], a[{F_(db)}:{F_(db)+3}], v[{p}:{p+3}], a[{o}:{o+3}]")
            if ops:
                a(ops.pop(0))
            if qb == 3:
                sc.read(db, V_AB, ubase + SEC_B + (2 * db + 1) * 1024)
    assert not ops
    a("s_nop 1")
    for qb in range(4):
        for s_ in range(2):
            p = P_(par, s_, qb)
            a(f"{MF} a[{L_(qb)}:{L_(qb)+3}], a[{A_ONES}:{A_ONES+3}], v[{p}:{p+3}], a[{L_(qb)}:{L_(qb)+3}]")
    RR = 64
    CH = 72
    TB = 0
    pre = [f"s_mov_b32 s{S_TMP}, {f32bits(2.0**100):#x}", f"v_mov_b32 v{CH}, 0", f"v_mov_b32 v{CH+1}, 0"]
    for qb in range(4):
        pre.append(f"v_accvgpr_read_b32 v{V_R+qb}, a{L_(qb)}")
    pre += [f"v_max3_f32 v{V_T}, v{V_R}, v{V_R+1}, v{V_R+2}",
            f"v_max_f32 v{V_T}, v{V_T}, v{V_R+3}",
            f"v_add_f32 v{V_T+1}, v{V_R}, v{V_R+1}",
            f"v_add_f32 v{V_T+2}, v{V_R+2}, v{V_R+3}",
            f"v_cmp_nle_f32 s[40:41], v{V_T}, s{S_TMP}",
            f"v_cmp_u_f32 s[42:43], v{V_T+1}, v{V_T+2}"]
    for qb in range(4):
        pre.append(f"v_rcp_f32 v{RR+2*qb}, v{V_R+qb}")
    pre.append("s_nop 0")
    for qb in range(4):
        pre.append(f"v_mov_b32 v{RR+2*qb+1}, v{RR+2*qb}")

    def chunk(e, qb):
        t = TB + 8 * qb
        po = 32 + 4 * qb
        o = O_(qb, 2 * e)
        r = []
        for i in range(8):
            r.append(f"v_accvgpr_read_b32 v{t+i}, a{o+i}")
        for i in range(0, 8, 2):
            r.append(f"v_pk_mul_f32 v[{t+i}:{t+i+1}], v[{t+i}:{t+i+1}], v[{RR+2*qb}:{RR+2*qb+1}]")
        for i in range(0, 8, 2):
            r.append(f"v_pk_fma_f32 v[{CH}:{CH+1}], v[{t+i}:{t+i+1}], 0, v[{CH}:{CH+1}]")
        for i in range(0, 8, 2):
            r.append(f"v_cvt_pk_bf16_f32 v{po+(i>>1)}, v{t+i}, v{t+i+1}")
        r.append(f"buffer_store_dwordx4 v[{po}:{po+3}], v{V_QOFF}, s[{S_OUT}:{S_OUT+3}], s{S_ROW+qb} offen offset:{e*64}")
        return r
    work = []
    for db in range(8):
        for qb in range(4):
            sc.time += 1
            sc.need([db])
            p = P_(par, 1, qb)
            o = O_(qb, db)
            a(f"{MF} a[{o}:{o+3}], a[{F_(db)}:{F_(db)+3}], v[{p}:{p+3}], a[{o}:{o+3}]")
            idx = db * 4 + qb
            if idx == 3:
                work += pre
            if db >= 2 and (db & 1) == 0 and qb == 2:
                for q2 in range(4):
                    work += chunk((db >> 1) - 1, q2)
            if idx == 3:
                a("s_nop 7")
            for _ in range(10):
                if work:
                    a(work.pop(0))
    for w_ in work:
        a(w_)
    a("s_nop 7")
    for q2 in range(4):
        for w_ in chunk(3, q2):
            a(w_)
    a(f"v_cmp_u_f32 vcc, v{CH}, v{CH+1}")
    a("s_or_b64 s[40:41], s[40:41], s[42:43]")
    a("s_or_b64 vcc, vcc, s[40:41]")
    if "nofb" not in OPT:
        a("s_cbranch_vccnz L_fallback")
    a("s_branch L_fin")


def rowmax(a, qb, m, extra=None):
    regs = [S_(kvb, qb) + r for kvb in range(4) for r in range(4)]
    if extra is None:
        a(f"v_max3_f32 v{m}, v{regs[0]}, v{regs[1]}, v{regs[2]}")
        for i in range(3, 15, 2):
            a(f"v_max3_f32 v{m}, v{m}, v{regs[i]}, v{regs[i+1]}")
        a(f"v_max_f32 v{m}, v{m}, v{regs[15]}")
    else:
        a(f"v_max3_f32 v{m}, v{regs[0]}, v{regs[1]}, v{extra}")
        for i in range(2, 16, 2):
            a(f"v_max3_f32 v{m}, v{m}, v{regs[i]}, v{regs[i+1]}")


def xlane_max(a, ms):
    for sw in ("v_permlane16_swap_b32", "v_permlane32_swap_b32"):
        for m in ms:
            a(f"v_mov_b32 v{m+1}, v{m}")
        a("s_nop 1")
        for m in ms:
            a(f"{sw} v{m}, v{m+1}")
        a("s_nop 1")
        for m in ms:
            a(f"v_max_f32 v{m}, v{m}, v{m+1}")


def gen_main(a):
    K = NAME + "_kernel"
    a.raw(".p2align 8")
    a.raw(f".globl {K}")
    a.raw(f".type {K},@function")
    a.label(K)
    a("s_cmp_ge_u32 s2, 256")
    a("s_cbranch_scc1 L_done")
    a("s_load_dwordx4 s[92:95], s[0:1], 0")
    a("s_load_dwordx4 s[96:99], s[0:1], 16")
    a("s_load_dwordx4 s[24:27], s[0:1], 32")
    a("s_load_dwordx4 s[28:31], s[0:1], 48")
    a("s_load_dwordx4 s[88:91], s[0:1], 64")
    if "tl" in OPT:
        a("s_memrealtime s[100:101]")
    a(f"v_lshrrev_b32 v{V_T}, 6, v0")
    a(f"v_and_b32 v{V_T+1}, 63, v0")
    a(f"v_readfirstlane_b32 s32, v{V_T}")
    if "scramble" in OPT:
        a("s_lshr_b32 s33, s2, 5")
        a("s_and_b32 s34, s2, 31")
    else:
        a("s_and_b32 s33, s2, 7")
        a("s_lshr_b32 s34, s2, 3")
    a(f"s_mov_b32 s{S_TILE}, s34")
    a(f"s_mov_b32 s{S_TASK}, s32")
    deq_lane_k(a, V_T + 1)
    a("s_waitcnt lgkmcnt(0)")
    srd(a, S_QK, 94, 0x800000)
    srd(a, S_KS, 98, 0x10000)
    srd(a, S_KZ, 24, 0x10000)
    srd(a, S_QV, 96, 0x800000)
    srd(a, S_VS, 26, 0x8000)
    srd(a, S_VZ, 28, 0x8000)
    deq_loads(a)
    def qloads():
        for qb in range(4):
            for ds in range(4):
                a(f"buffer_load_dwordx4 a[{Q_(qb,ds)}:{Q_(qb,ds)+3}], v{V_QOFF}, s[{S_Q}:{S_Q+3}], s{S_ROW+qb} offen offset:{64*ds}")
    srd(a, S_WS, 90, 0x10000000)
    srd(a, S_Q, 92, 0x1000000)
    srd(a, S_OUT, 30, 0x1000000)
    srd(a, S_DBG, 88, 256)
    deq_lane_v(a)
    a(f"v_lshlrev_b32 v{V_L16}, 4, v{V_T+1}")
    a("s_and_b32 s35, s34, 3")
    a("s_lshl_b32 s36, s33, 2")
    a("s_add_u32 s35, s35, s36")
    a("s_lshr_b32 s36, s34, 2")
    a("s_lshl_b32 s35, s35, 11")
    a("s_lshl_b32 s36, s36, 8")
    a("s_add_u32 s35, s35, s36")
    a("s_lshl_b32 s36, s32, 6")
    a("s_add_u32 s35, s35, s36")
    a("s_lshl_b32 s35, s35, 8")
    a("s_add_u32 s36, s35, 0x1000")
    a("s_add_u32 s37, s35, 0x2000")
    a("s_add_u32 s38, s35, 0x3000")
    a(f"s_lshl_b32 s{S_HB}, s33, 21")
    a(f"s_lshl_b32 s{S_W8K}, s32, 13")
    a(f"s_mov_b32 s{S_MASK}, 0xffff0000")
    a(f"s_mov_b32 s{S_CS}, {f32bits(math.log2(math.e) / math.sqrt(128.0)):#x}")
    a(f"s_mov_b32 s{S_CS+1}, s{S_CS}")
    a(f"s_mov_b32 s{S_FLAG}, 0")
    a(f"s_mov_b32 s{S_HELPED}, 0")
    deq_outoffs(a)
    a(f"v_lshlrev_b32 v{V_QOFF}, 8, v6")
    a(f"v_lshl_add_u32 v{V_QOFF}, v7, 4, v{V_QOFF}")
    if "lateq" not in OPT:
        qloads()
    a(f"s_add_u32 s39, s{S_HB}, s{S_W8K}")
    a(f"v_add_u32 v{V_DMA0}, s39, v{V_L16}")
    a(f"v_add_u32 v{V_DMA1}, 0x1000, v{V_DMA0}")
    a("s_lshl_b32 s39, s33, 5")
    a(f"v_add_u32 v{V_POLL}, s39, v8")
    a(f"v_subrev_u32 v{V_NEED}, s34, v8")
    a(f"v_add_u32 v{V_NEED}, -1, v{V_NEED}")
    a(f"v_and_b32 v{V_NEED}, 28, v{V_NEED}")
    a(f"s_xor_b32 s75, s{S_W8K}, 0x4000")
    a("s_lshr_b32 s75, s75, 1")
    a(f"v_add_u32 v{V_LW}, s75, v{V_L16}")
    a(f"v_mov_b32 v{V_AB}, v{V_L16}")
    for i in range(4):
        a(f"v_mov_b32 v{12+i}, 0")
    a(f"v_mov_b32 v{V_T}, 0x3f803f80")
    for i in range(4):
        a(f"v_accvgpr_write_b32 a{A_ONES+i}, v{V_T}")
    for i in range(8):
        a(f"v_mfma_f32_32x32x16_bf16 a[{16*i}:{16*i+15}], v[12:15], v[12:15], 0")
    a(f"v_mfma_f32_32x32x16_bf16 a[{L_(0)}:{L_(0)+15}], v[12:15], v[12:15], 0")
    if "tl" in OPT:
        a("s_memrealtime s[94:95]")
        a("s_waitcnt lgkmcnt(0)")
        a("v_mov_b32 v248, s94")
    deq_compute(a, "0", 0 if "lateq" in OPT else 16)
    if "tl" in OPT:
        a("s_memrealtime s[94:95]")
        a("s_waitcnt lgkmcnt(0)")
        a("v_mov_b32 v249, s94")
    if "lateq" in OPT:
        qloads()
        a("s_waitcnt vmcnt(16) lgkmcnt(0)")
    else:
        a("s_waitcnt vmcnt(0) lgkmcnt(0)")
    if "tl" in OPT:
        a("s_memrealtime s[94:95]")
        a("s_waitcnt lgkmcnt(0)")
        a("v_mov_b32 v250, s94")
    a("s_barrier")
    a("s_cmp_lg_u32 s32, 0")
    a("s_cbranch_scc1 L_pub_done")
    a(f"s_add_u32 s39, s39, s34")
    a(f"v_mov_b32 v{V_T}, 1")
    a(f"v_mov_b32 v{V_T+1}, s39")
    a("s_mov_b64 exec, 1")
    a(f"buffer_store_byte v{V_T}, v{V_T+1}, s[{S_DBG}:{S_DBG+3}], 0 offen sc1")
    a("s_mov_b64 exec, -1")
    a.label("L_pub_done")
    a.label("L_go")
    sc = Sched(a)
    for f in range(8):
        sc.read(f, V_AB, SEC_B + f * 1024)
    for k in range(64):
        sc.time += 1
        kvb, qb, ds = k >> 4, (k >> 2) & 3, k & 3
        f = 4 * (kvb & 1) + ds
        sc.need([f])
        d = S_(kvb, qb)
        c = "0" if ds == 0 else f"v[{d}:{d+3}]"
        a(f"{MF} v[{d}:{d+3}], a[{F_(f)}:{F_(f)+3}], a[{Q_(qb,ds)}:{Q_(qb,ds)+3}], {c}")
        if qb == 3 and kvb < 2:
            sc.read(f, V_AB, SEC_A + (kvb * 4 + ds) * 1024)
    a("s_nop 15")
    ms = [V_T + 2 * qb for qb in range(4)]
    for qb in range(4):
        rowmax(a, qb, ms[qb])
    xlane_max(a, ms)
    for qb in range(4):
        for r in range(4):
            a(f"v_sub_f32 v{NEGM+4*qb+r}, 0, v{ms[qb]}")
    for kvb in range(4):
        for qb in range(4):
            for r in range(4):
                s = S_(kvb, qb) + r
                a(f"v_add_f32 v{s}, v{s}, v{NEGM+4*qb}")
    for j in range(16, 64):
        a(exp_op(j, 1))
        if (j & 1) == 0 and j > 16:
            a(cvt_op(j - 1, 1))
    a("s_nop 0")
    a(cvt_op(63, 1))
    poll(a, "1", True, "s_waitcnt lgkmcnt(0)")
    if "tl" in OPT:
        a("s_memrealtime s[94:95]")
        a("s_waitcnt lgkmcnt(0)")
        a("v_mov_b32 v251, s94")
    a(f"s_lshl_b32 s{S_DOFF}, s34, 15")
    a(f"s_lshr_b32 s75, s{S_W8K}, 2")
    a(f"s_add_u32 m0, s75, {SEC_C}")
    a(f"s_sub_u32 s75, s75, s{S_W8K}")
    a(f"s_add_u32 s75, s75, {SEC_C}")
    a(f"s_add_u32 s75, s75, s{S_DOFF}")
    for i in range(2):
        a(f"buffer_load_dwordx4 v{V_DMA0}, s[{S_WS}:{S_WS+3}], s75 offen offset:{1024*i} lds")
    a(f"s_add_u32 s{S_DOFF}, s{S_DOFF}, 0x8000")
    a(f"s_and_b32 s{S_DOFF}, s{S_DOFF}, 0xfffff")
    a(f"s_add_u32 s{S_SLB}, s{S_W8K}, 0x8000")
    dma_tile(a)
    dma_tile(a)
    dma_tile(a)
    if "tl" in OPT:
        a("s_memrealtime s[74:75]")
        a("s_waitcnt lgkmcnt(0)")
    poll(a, "2", False, "s_waitcnt vmcnt(24) lgkmcnt(0)")
    for f in range(8):
        sc.read(f, V_AB, SEC_C + f * 1024)
    a("s_waitcnt lgkmcnt(0)")
    scratch = Asm()
    sc2 = Sched(scratch)
    for _ in range(3):
        gen_body(scratch, sc2, 0)
        gen_body(scratch, sc2, 1)
    state0 = (list(sc2.carry), [(f, sc2.time - t) for f, t in sc2.pending])
    sc2.a = a
    sc = sc2
    a(f"s_mov_b32 s{S_CNT}, 15")
    if "tl" in OPT:
        a("s_memrealtime s[76:77]")
        a("s_waitcnt lgkmcnt(0)")
    if "stamp" in OPT:
        a("s_memtime s[48:49]")
        a("s_memrealtime s[64:65]")
        a("s_waitcnt lgkmcnt(0)")
    a.raw(".p2align 6")
    a.label("L_loop")
    gen_body(a, sc, 0)
    gen_body(a, sc, 1)
    assert state0 == (list(sc.carry), [(f, sc.time - t) for f, t in sc.pending])
    a(f"s_sub_u32 s{S_CNT}, s{S_CNT}, 1")
    a(f"s_cmp_lg_u32 s{S_CNT}, 0")
    a("s_cbranch_scc1 L_loop")
    if "stamp" in OPT:
        a("s_memtime s[50:51]")
        a("s_memrealtime s[66:67]")
        a("s_waitcnt lgkmcnt(0)")
    if "tl" in OPT:
        a("s_memrealtime s[78:79]")
        a("s_waitcnt lgkmcnt(0)")
    gen_body(a, sc, 0)
    if "oldlast" in OPT:
        gen_body(a, sc, 1, last=True)
    else:
        if "tl" in OPT:
            a("s_memrealtime s[80:81]")
            a("s_waitcnt lgkmcnt(0)")
        gen_last(a, sc, 1)
    a.label("L_epi")
    a("s_waitcnt vmcnt(0)")
    a("s_nop 15")
    a(f"s_mov_b32 s{S_TMP}, {f32bits(2.0**100):#x}")
    for qb in range(4):
        a(f"v_accvgpr_read_b32 v{V_R+qb}, a{L_(qb)}")
    a(f"v_max3_f32 v{V_T}, v{V_R}, v{V_R+1}, v{V_R+2}")
    a(f"v_max_f32 v{V_T}, v{V_T}, v{V_R+3}")
    a(f"v_add_f32 v{V_T+1}, v{V_R}, v{V_R+1}")
    a(f"v_add_f32 v{V_T+2}, v{V_R+2}, v{V_R+3}")
    a(f"v_cmp_nle_f32 s[40:41], v{V_T}, s{S_TMP}")
    a(f"v_cmp_u_f32 s[42:43], v{V_T+1}, v{V_T+2}")
    for qb in range(4):
        a(f"v_rcp_f32 v{V_R+qb}, v{V_R+qb}")
    a(f"v_mov_b32 v{V_T}, 0")
    a(f"v_mov_b32 v{V_T+1}, 0")
    for qb in range(4):
        for db in range(8):
            o = O_(qb, db)
            for r in range(0, 4, 2):
                t = 64 + ((db * 4 + r) & 7)
                a(f"v_accvgpr_read_b32 v{t}, a{o+r}")
                a(f"v_accvgpr_read_b32 v{t+1}, a{o+r+1}")
                a(f"v_mul_f32 v{t}, v{t}, v{V_R+qb}")
                a(f"v_mul_f32 v{t+1}, v{t+1}, v{V_R+qb}")
                a(f"v_fma_f32 v{V_T}, v{t}, 0, v{V_T}")
                a(f"v_fma_f32 v{V_T+1}, v{t+1}, 0, v{V_T+1}")
                a(f"v_cvt_pk_bf16_f32 v{qb*16+db*2+(r>>1)}, v{t}, v{t+1}")
    a(f"v_cmp_u_f32 vcc, v{V_T}, v{V_T+1}")
    a("s_or_b64 s[40:41], s[40:41], s[42:43]")
    a("s_or_b64 vcc, vcc, s[40:41]")
    a(f"s_cmp_lg_u32 s{S_FLAG}, 0")
    a("s_cbranch_scc1 L_store")
    if "nofb" not in OPT:
        a("s_cbranch_vccnz L_fallback")
    a.label("L_store")
    if "tl" in OPT and "oldlast" in OPT:
        a("s_memrealtime s[80:81]")
    for qb in range(4):
        for e in range(4):
            r = qb * 16 + e * 4
            a(f"buffer_store_dwordx4 v[{r}:{r+3}], v{V_QOFF}, s[{S_OUT}:{S_OUT+3}], s{S_ROW+qb} offen offset:{e*64}")
    a.label("L_fin")
    if "tl" in OPT:
        a("s_waitcnt vmcnt(0)")
        a("s_memrealtime s[82:83]")
        a("s_waitcnt lgkmcnt(0)")
        a("s_lshl_b32 s84, s2, 7")
        a("s_lshl_b32 s85, s32, 5")
        a("s_add_u32 s84, s84, s85")
        a("s_add_u32 s84, s84, 0x4100000")
        for i, r in enumerate((100, 74, 76, 78, 80, 82)):
            a(f"v_mov_b32 v{70+i}, s{r}")
        a("v_mov_b32 v76, v251")
        a("v_mov_b32 v77, 0")
        a("v_mov_b32 v78, 0")
        a("s_mov_b64 exec, 1")
        a(f"buffer_store_dwordx4 v[70:73], v78, s[{S_WS}:{S_WS+3}], s84 offen")
        a(f"buffer_store_dwordx4 v[74:77], v78, s[{S_WS}:{S_WS+3}], s84 offen offset:16")
        if "dbgtl" in OPT:
            a("s_mov_b64 exec, -1")
            a("v_subrev_u32 v60, s100, v249")
            a("v_subrev_u32 v61, s100, v251")
            a("v_subrev_u32 v62, s100, v72")
            a("v_subrev_u32 v63, s100, v75")
            a("s_mov_b64 exec, 1")
            a("s_and_b32 s85, s2, 63")
            a("s_lshr_b32 s86, s2, 6")
            a("s_cmp_lg_u32 s85, s86")
            a("s_cbranch_scc1 L_nodbg")
            a("s_cmp_lg_u32 s32, 0")
            a("s_cbranch_scc1 L_nodbg")
            a("s_lshl_b32 s86, s86, 4")
            a(f"buffer_store_dwordx4 v[60:63], v78, s[{S_DBG}:{S_DBG+3}], s86 offen")
            a.label("L_nodbg")
        a("s_add_u32 s84, s84, 0x100000")
        a(f"buffer_store_dwordx4 v[248:251], v78, s[{S_WS}:{S_WS+3}], s84 offen")
        a(f"buffer_store_dwordx4 v[252:255], v78, s[{S_WS}:{S_WS+3}], s84 offen offset:16")
    if "stamp" in OPT:
        a("s_memtime s[52:53]")
        a("s_memrealtime s[54:55]")
        a("s_waitcnt lgkmcnt(0)")
        a("s_sub_u32 s52, s52, s44")
        a("s_sub_u32 s54, s54, s46")
        a("s_sub_u32 s50, s50, s48")
        a("s_sub_u32 s48, s48, s44")
        a("s_sub_u32 s66, s66, s64")
        a("s_sub_u32 s64, s64, s46")
        srd(a, 60, 56, 256)
        a("s_lshl_b32 s58, s2, 5")
        a("s_cmp_ge_u32 s2, 8")
        a("s_cbranch_scc1 L_done")
        a("s_cmp_lg_u32 s32, 0")
        a("s_cbranch_scc1 L_done")
        a("s_nop 4")
        a("v_mov_b32 v70, s52")
        a("v_mov_b32 v71, s54")
        a("v_mov_b32 v72, s50")
        a("v_mov_b32 v73, s48")
        a("v_mov_b32 v74, 0")
        a("s_mov_b64 exec, 1")
        a("v_mov_b32 v76, s66")
        a("v_mov_b32 v77, s64")
        a("v_mov_b32 v78, 0")
        a("v_mov_b32 v79, 0")
        a("buffer_store_dwordx4 v[70:73], v74, s[60:63], s58 offen")
        a("buffer_store_dwordx4 v[76:79], v74, s[60:63], s58 offen offset:16")
    a.label("L_done")
    a("s_endpgm")

    a.label("L_selfhelp")
    a("s_waitcnt vmcnt(0) lgkmcnt(0)")
    a("s_barrier")
    a(f"s_mov_b32 s{S_HELPED}, 1")
    a(f"s_mov_b32 s{S_TILE}, 0")
    a.label("L_sh_tile")
    a(f"v_mov_b32 v{V_LW}, {NSLOT*SLOTB}")
    deq_loads(a)
    deq_outoffs(a)
    deq_compute(a, "1")
    a("s_waitcnt vmcnt(0) lgkmcnt(0)")
    a(f"s_add_u32 s{S_TILE}, s{S_TILE}, 1")
    a(f"s_cmp_lt_u32 s{S_TILE}, 32")
    a("s_cbranch_scc1 L_sh_tile")
    a("s_barrier")
    a("buffer_inv sc1")
    a("s_waitcnt vmcnt(0)")
    a("s_barrier")
    a("s_branch L_go")

    a.label("L_fallback")
    a("s_waitcnt vmcnt(0)")
    a(f"s_mov_b32 s{S_FLAG}, 1")
    for i in range(128):
        a(f"v_accvgpr_write_b32 a{i}, 0")
    for i in range(16):
        a(f"v_accvgpr_write_b32 a{L_(0)+i}, 0")
    for qb in range(4):
        a(f"v_mov_b32 v{V_M+qb}, {f32bits(-3.0e38):#x}")
    a("s_mov_b32 s39, 0")
    a(f"s_mov_b32 s{S_CNT}, 32")
    a.label("L_fb_loop")

    def fb_load8(delta):
        a(f"s_add_u32 s{S_DOFF}, s39, {delta & 0xffffffff:#x}")
        a(f"s_and_b32 s{S_DOFF}, s{S_DOFF}, 0xfffff")
        a(f"s_add_u32 s{S_DOFF}, s{S_DOFF}, s{S_HB}")
        for q4 in range(2):
            for i in range(4):
                f = q4 * 4 + i
                a(f"buffer_load_dwordx4 a[{F_(f)}:{F_(f)+3}], v{V_L16}, s[{S_WS}:{S_WS+3}], s{S_DOFF} offen offset:{1024*i}")
            a(f"s_add_u32 s{S_DOFF}, s{S_DOFF}, 0x1000")
        a("s_waitcnt vmcnt(0)")
    for half in range(2):
        fb_load8(-8192 if half == 0 else 0)
        for kv2 in range(2):
            kvb = half * 2 + kv2
            for qb in range(4):
                d = S_(kvb, qb)
                for ds in range(4):
                    f = kv2 * 4 + ds
                    c = "0" if ds == 0 else f"v[{d}:{d+3}]"
                    a(f"{MF} v[{d}:{d+3}], a[{F_(f)}:{F_(f)+3}], a[{Q_(qb,ds)}:{Q_(qb,ds)+3}], {c}")
        a("s_nop 15")
    for qb in range(4):
        rowmax(a, qb, ms[qb], extra=V_M + qb)
    xlane_max(a, ms)
    for qb in range(4):
        m = ms[qb]
        al = m + 1
        a(f"v_sub_f32 v{al}, v{V_M+qb}, v{m}")
        a(f"v_exp_f32 v{al}, v{al}")
        a(f"v_mov_b32 v{V_M+qb}, v{m}")
        regs = [O_(qb, db) + r for db in range(8) for r in range(4)] + [L_(qb) + r for r in range(4)]
        for o in regs:
            a(f"v_accvgpr_read_b32 v{V_T+8}, a{o}")
            a(f"v_mul_f32 v{V_T+8}, v{V_T+8}, v{al}")
            a(f"v_accvgpr_write_b32 a{o}, v{V_T+8}")
    for kvb in range(4):
        for qb in range(4):
            for r in range(4):
                s = S_(kvb, qb) + r
                a(f"v_sub_f32 v{s}, v{s}, v{ms[qb]}")
    for s in range(64):
        a(f"v_exp_f32 v{s}, v{s}")
    a("s_nop 0")
    for kvb in range(4):
        for qb in range(4):
            for r in range(0, 4, 2):
                s = S_(kvb, qb) + r
                p = P_(0, kvb >> 1, qb) + (kvb & 1) * 2 + (r >> 1)
                a(f"v_cvt_pk_bf16_f32 v{p}, v{s}, v{s+1}")
    a("s_nop 1")
    for qb in range(4):
        for s in range(2):
            p = P_(0, s, qb)
            a(f"{MF} a[{L_(qb)}:{L_(qb)+3}], a[{A_ONES}:{A_ONES+3}], v[{p}:{p+3}], a[{L_(qb)}:{L_(qb)+3}]")
    for half in range(2):
        fb_load8(SLOTB + SEC_B + half * 8192)
        for f in range(8):
            fv = half * 8 + f
            db, s = fv >> 1, fv & 1
            for qb in range(4):
                p = P_(0, s, qb)
                o = O_(qb, db)
                a(f"{MF} a[{o}:{o+3}], a[{F_(f)}:{F_(f)+3}], v[{p}:{p+3}], a[{o}:{o+3}]")
        a("s_nop 15")
    a(f"s_add_u32 s39, s39, {SLOTB}")
    a(f"s_sub_u32 s{S_CNT}, s{S_CNT}, 1")
    a(f"s_cmp_lg_u32 s{S_CNT}, 0")
    a("s_cbranch_scc1 L_fb_loop")
    a("s_branch L_epi")


def descriptor(a, name, vgpr, sgpr, accum):
    a.raw(f".amdhsa_kernel {name}")
    a.raw(f"  .amdhsa_next_free_vgpr {vgpr}")
    a.raw(f"  .amdhsa_next_free_sgpr {sgpr}")
    a.raw(f"  .amdhsa_accum_offset {accum}")
    a.raw("  .amdhsa_group_segment_fixed_size 0")
    a.raw("  .amdhsa_kernarg_size 80")
    a.raw("  .amdhsa_user_sgpr_count 2")
    a.raw("  .amdhsa_user_sgpr_kernarg_segment_ptr 1")
    a.raw("  .amdhsa_system_sgpr_workgroup_id_x 1")
    a.raw(".end_amdhsa_kernel")


def main():
    out = sys.argv[1] if len(sys.argv) > 1 else OUT
    a = Asm()
    a.raw(HEADER.rstrip("\n"))
    if "list" in OPT:
        a.raw(f"; @launch kernel={NAME}_kernel grid=(256,1,1) block=(256,1,1) lds={NSLOT*SLOTB+8192}")
    else:
        a.raw(f"; @launch grid=(256,1,1) block=(256,1,1) lds={NSLOT*SLOTB+8192}")
    a.raw('.amdgcn_target "amdgcn-amd-amdhsa--gfx950"')
    a.raw(".text")
    gen_main(a)
    a.raw('.section .rodata,"a"')
    a.raw(".p2align 6")
    descriptor(a, NAME + "_kernel", 512, 102, 256)
    open(out, "w").write(a.text())


if __name__ == "__main__":
    main()
```

```python
import math
import os
import struct
import sys

OPT = set(os.environ.get("GENOPT", "").split(",")) | {"noinv", "ntst", "dmasc1"}
OPT -= set(os.environ.get("GENNOT", "").split(","))
NAME = "standalone__kv_cache_quant_int4_int2_kv_with_per_channel_or_per_token_scales__prompt"
OUT = f"cdna_kernels/{NAME}.s"

HEADER = """; Kernarg layout for this problem (80 bytes, ptrs only, base s[0:1]):
;   offset   0: d_in[0] q  shape=(1, 32, 2048, 128) dtype=bfloat16 strides=(16777216, 524288, 256, 2) contiguous=True
;   offset   8: d_in[1] qk  shape=(1, 8, 2048, 128) dtype=int32 strides=(8388608, 1048576, 512, 4) contiguous=True
;   offset  16: d_in[2] qv  shape=(1, 8, 2048, 128) dtype=int32 strides=(8388608, 1048576, 512, 4) contiguous=True
;   offset  24: d_in[3] k_scales  shape=(1, 8, 32, 128) dtype=bfloat16 strides=(65536, 8192, 256, 2) contiguous=True
;   offset  32: d_in[4] k_zeros  shape=(1, 8, 32, 128) dtype=bfloat16 strides=(65536, 8192, 256, 2) contiguous=True
;   offset  40: d_in[5] v_scales  shape=(1, 8, 2048, 1) dtype=bfloat16 strides=(32768, 4096, 2, 2) contiguous=True
;   offset  48: d_in[6] v_zeros  shape=(1, 8, 2048, 1) dtype=bfloat16 strides=(32768, 4096, 2, 2) contiguous=True
;
; Phase 1: it dequantises its own 64-token K/V tile (same bf16 rounding steps as the reference; the
;   softmax scale * log2(e) is folded into K) into d_ws as ready-to-use MFMA fragments (write-through
;   need (agent-scope loads); if a producer never shows up they dequantise the whole head themselves.
; Phase 2: flash attention for (q head, 256 query rows), 4 waves x 64 rows, kv tiles visited
;   through the MFMA C operand), P = exp2(S^T), O^T += V^T P^T, row sums via a ones-operand MFMA.
;   If a later tile makes that reference max unsafe (row sum too large / non finite output) the wave
"""


def f32bits(x):
    return struct.unpack("<I", struct.pack("<f", x))[0]


class Asm:
    def __init__(self):
        self.lines = []

    def __call__(self, s):
        if "nt" in OPT and s.startswith("buffer_load_dwordx4") and " lds" not in s and ("s[44:47]" in s or "s[48:51]" in s or "s[8:11]" in s):
            s += " nt"
        if "dmasc1" in OPT and s.startswith("buffer_load_dwordx4") and "s[4:7]" in s:
            s = s.replace(" lds", " sc1 lds") if " lds" in s else s + " sc1"
        if "ntst" in OPT and s.startswith("buffer_store_dwordx4") and "s[12:15]" in s:
            s += " nt"
        self.lines.append("    " + s)

    def label(self, s):
        self.lines.append(s + ":")

    def raw(self, s):
        self.lines.append(s)

    def text(self):
        return "\n".join(self.lines) + "\n"


def srd(a, d, base, nbytes):
    a(f"s_mov_b32 s{d}, s{base}")
    a(f"s_and_b32 s{d+1}, s{base+1}, 0xffff")
    a(f"s_mov_b32 s{d+2}, {nbytes:#x}")
    a(f"s_mov_b32 s{d+3}, 0x00020000")


S_QK, S_QV, S_KS, S_KZ, S_VS, S_VZ, S_DBG = 44, 48, 52, 56, 60, 64, 68
S_TILE, S_TASK = 72, 73
S_MASK, S_CS = 84, 86
S_I8, S_I4, S_MODE, S_PCNT, S_HELPED = 88, 89, 90, 91, 92
KD, KSC, KZR = 16, 48, 64
WW, ZZ, SS, TT, OO = 80, 88, 96, 104, 108
VD, VRAW, VUN = 128, 192, 200
V_KIN, V_KSO, V_VIN, V_VSO, V_VOUT, V_LW, V_NEED, V_VST, V_VRD = 240, 241, 242, 243, 244, 245, 246, 247, 191


def deq_lane_k(a, lane):
    a(f"v_and_b32 v6, 15, v{lane}")
    a(f"v_lshrrev_b32 v7, 4, v{lane}")
    a(f"v_lshlrev_b32 v{V_KIN}, 9, v6")
    a(f"v_lshl_add_u32 v{V_KIN}, v7, 5, v{V_KIN}")
    a(f"v_lshlrev_b32 v{V_KSO}, 4, v7")
    a(f"v_and_b32 v8, 31, v{lane}")
    a(f"v_lshrrev_b32 v9, 5, v{lane}")
    a(f"v_lshlrev_b32 v{V_VIN}, 11, v9")
    a(f"v_lshl_add_u32 v{V_VIN}, v8, 4, v{V_VIN}")
    a(f"v_lshlrev_b32 v{V_VSO}, 3, v9")


def deq_lane_v(a):
    a("v_lshrrev_b32 v10, 3, v8")
    a(f"v_lshlrev_b32 v{V_VOUT}, 12, v10")
    a("v_and_b32 v10, 1, v8")
    a(f"v_lshl_add_u32 v{V_VOUT}, v10, 11, v{V_VOUT}")
    a("v_bfe_u32 v10, v8, 1, 2")
    a(f"v_lshl_add_u32 v{V_VOUT}, v10, 6, v{V_VOUT}")
    a(f"v_lshl_add_u32 v{V_VOUT}, v9, 8, v{V_VOUT}")
    a(f"v_lshlrev_b32 v{V_VST}, 11, v9")
    a(f"v_lshl_add_u32 v{V_VST}, v8, 4, v{V_VST}")
    a("s_lshl_b32 s75, s78, 10")
    a("s_lshl_b32 s76, s79, 9")
    a("s_add_u32 s75, s75, s76")
    a(f"s_add_u32 s75, s75, {32768 + 8192}")
    a(f"v_add_u32 v{V_VOUT}, s75, v{V_VOUT}")
    a(f"v_add_u32 v{V_VRD}, s75, v{V_VST}")


def deq_loads(a):
    a("s_lshl_b32 s75, s33, 5")
    a(f"s_add_u32 s75, s75, s{S_TILE}")
    a("s_lshl_b32 s76, s75, 8")
    a("s_lshl_b32 s77, s75, 6")
    a(f"s_lshl_b32 s74, s{S_TASK}, 4")
    a("s_add_u32 s74, s74, s77")
    a("s_lshl_b32 s74, s74, 9")
    for i in range(4):
        a(f"buffer_load_dwordx4 v[{KD+8*i}:{KD+8*i+3}], v{V_KIN}, s[{S_QK}:{S_QK+3}], s74 offen offset:{128*i}")
        a(f"buffer_load_dwordx4 v[{KD+8*i+4}:{KD+8*i+7}], v{V_KIN}, s[{S_QK}:{S_QK+3}], s74 offen offset:{128*i+16}")
    for i in range(4):
        a(f"buffer_load_dwordx4 v[{KSC+4*i}:{KSC+4*i+3}], v{V_KSO}, s[{S_KS}:{S_KS+3}], s76 offen offset:{64*i}")
        a(f"buffer_load_dwordx4 v[{KZR+4*i}:{KZR+4*i+3}], v{V_KSO}, s[{S_KZ}:{S_KZ+3}], s76 offen offset:{64*i}")
    a(f"s_lshr_b32 s78, s{S_TASK}, 1")
    a(f"s_and_b32 s79, s{S_TASK}, 1")
    a("s_lshl_b32 s75, s78, 5")
    a("s_add_u32 s77, s77, s75")
    a("s_lshl_b32 s75, s79, 3")
    a("s_add_u32 s77, s77, s75")
    a("s_lshl_b32 s80, s77, 1")
    a("s_lshl_b32 s77, s77, 9")
    a("s_add_u32 s81, s77, 8192")
    for j in range(8):
        so = "s77" if j < 4 else "s81"
        a(f"buffer_load_dwordx4 v[{VD+4*j}:{VD+4*j+3}], v{V_VIN}, s[{S_QV}:{S_QV+3}], {so} offen offset:{512*(j&3)}")
    a(f"buffer_load_dwordx2 v[{VRAW}:{VRAW+1}], v{V_VSO}, s[{S_VS}:{S_VS+3}], s80 offen")
    a(f"buffer_load_dwordx2 v[{VRAW+2}:{VRAW+3}], v{V_VSO}, s[{S_VS}:{S_VS+3}], s80 offen offset:32")
    a(f"buffer_load_dwordx2 v[{VRAW+4}:{VRAW+5}], v{V_VSO}, s[{S_VZ}:{S_VZ+3}], s80 offen")
    a(f"buffer_load_dwordx2 v[{VRAW+6}:{VRAW+7}], v{V_VSO}, s[{S_VZ}:{S_VZ+3}], s80 offen offset:32")


def deq_outoffs(a):
    a(f"s_lshl_b32 s82, s{S_TILE}, 15")
    a("s_add_u32 s83, s82, 0x8000")
    a("s_and_b32 s83, s83, 0xfffff")
    a("s_add_u32 s83, s83, 8192")
    a("s_lshl_b32 s75, s78, 10")
    a("s_add_u32 s83, s83, s75")
    a("s_lshl_b32 s75, s79, 9")
    a("s_add_u32 s83, s83, s75")
    a(f"s_add_u32 s83, s83, s{S_HB}")
    a(f"s_lshl_b32 s75, s{S_TASK}, 12")
    a("s_add_u32 s82, s82, s75")
    a("s_sub_u32 s82, s82, 8192")
    a("s_and_b32 s82, s82, 0xfffff")
    a(f"s_add_u32 s82, s82, s{S_HB}")


def rnd_unpack(a):
    for p in range(4):
        a(f"v_cvt_pk_bf16_f32 v{TT+p}, v{WW+2*p}, v{WW+2*p+1}")
    for p in range(4):
        a(f"v_lshlrev_b32 v{WW+2*p}, 16, v{TT+p}")
        a(f"v_and_b32 v{WW+2*p+1}, s{S_MASK}, v{TT+p}")


def deq_compute(a, tag, extra=0):
    a(f"s_waitcnt vmcnt({12+extra})")
    a(f"s_mov_b32 s{S_I8}, 0")
    a(f"s_mov_b32 s{S_I4}, 0")
    a.label(f"L_dk{tag}")
    a(f"s_set_gpr_idx_on s{S_I8}, gpr_idx(SRC0)")
    a("s_nop 1")
    for k in range(8):
        a(f"v_cvt_f32_i32 v{WW+k}, v{KD+k}")
    a(f"s_set_gpr_idx_idx s{S_I4}")
    a("s_set_gpr_idx_mode gpr_idx(SRC1)")
    a("s_nop 1")
    for p in range(4):
        a(f"v_lshlrev_b32 v{ZZ+2*p}, 16, v{KZR+p}")
        a(f"v_and_b32 v{ZZ+2*p+1}, s{S_MASK}, v{KZR+p}")
        a(f"v_lshlrev_b32 v{SS+2*p}, 16, v{KSC+p}")
        a(f"v_and_b32 v{SS+2*p+1}, s{S_MASK}, v{KSC+p}")
    a("s_set_gpr_idx_off")
    a("s_nop 1")
    for p in range(4):
        a(f"v_pk_add_f32 v[{WW+2*p}:{WW+2*p+1}], v[{WW+2*p}:{WW+2*p+1}], v[{ZZ+2*p}:{ZZ+2*p+1}] neg_lo:[0,1] neg_hi:[0,1]")
    rnd_unpack(a)
    for p in range(4):
        a(f"v_pk_mul_f32 v[{WW+2*p}:{WW+2*p+1}], v[{WW+2*p}:{WW+2*p+1}], v[{SS+2*p}:{SS+2*p+1}]")
    rnd_unpack(a)
    for p in range(4):
        a(f"v_pk_mul_f32 v[{WW+2*p}:{WW+2*p+1}], v[{WW+2*p}:{WW+2*p+1}], s[{S_CS}:{S_CS+1}]")
    for p in range(4):
        a(f"v_cvt_pk_bf16_f32 v{OO+p}, v{WW+2*p}, v{WW+2*p+1}")
    a(f"buffer_store_dwordx4 v[{OO}:{OO+3}], v{V_L16}, s[{S_WS}:{S_WS+3}], s82 offen sc1")
    a(f"ds_write_b128 v{V_LW}, v[{OO}:{OO+3}]")
    a(f"v_add_u32 v{V_LW}, 0x400, v{V_LW}")
    a("s_add_u32 s82, s82, 0x400")
    a(f"s_add_u32 s{S_I8}, s{S_I8}, 8")
    a(f"s_add_u32 s{S_I4}, s{S_I4}, 4")
    a(f"s_cmp_lt_u32 s{S_I4}, 16")
    a(f"s_cbranch_scc1 L_dk{tag}")
    a(f"s_waitcnt vmcnt({4+extra})")
    for p in range(4):
        a(f"v_lshlrev_b32 v{SS+2*p}, 16, v{VRAW+p}")
        a(f"v_and_b32 v{SS+2*p+1}, s{S_MASK}, v{VRAW+p}")
        a(f"v_lshlrev_b32 v{ZZ+2*p}, 16, v{VRAW+4+p}")
        a(f"v_and_b32 v{ZZ+2*p+1}, s{S_MASK}, v{VRAW+4+p}")
    a(f"s_mov_b32 s{S_I4}, 0")
    a.label(f"L_dv{tag}")
    a(f"s_set_gpr_idx_on s{S_I4}, gpr_idx(SRC0)")
    a("s_nop 1")
    for j in range(8):
        a(f"v_cvt_f32_i32 v{WW+j}, v{VD+4*j}")
    a("s_set_gpr_idx_off")
    a("s_nop 1")
    for p in range(4):
        a(f"v_pk_add_f32 v[{WW+2*p}:{WW+2*p+1}], v[{WW+2*p}:{WW+2*p+1}], v[{ZZ+2*p}:{ZZ+2*p+1}] neg_lo:[0,1] neg_hi:[0,1]")
    rnd_unpack(a)
    for p in range(4):
        a(f"v_pk_mul_f32 v[{WW+2*p}:{WW+2*p+1}], v[{WW+2*p}:{WW+2*p+1}], v[{SS+2*p}:{SS+2*p+1}]")
    for p in range(4):
        a(f"v_cvt_pk_bf16_f32 v{OO+p}, v{WW+2*p}, v{WW+2*p+1}")
    a(f"ds_write_b128 v{V_VOUT}, v[{OO}:{OO+3}]")
    a(f"v_add_u32 v{V_VOUT}, 16, v{V_VOUT}")
    a(f"s_add_u32 s{S_I4}, s{S_I4}, 1")
    a(f"s_cmp_lt_u32 s{S_I4}, 4")
    a(f"s_cbranch_scc1 L_dv{tag}")
    a(f"v_add_u32 v{V_VOUT}, -64, v{V_VOUT}")
    for k in range(4):
        a(f"ds_read_b128 v[{KD+4*k}:{KD+4*k+3}], v{V_VRD} offset:{4096*k}")
    for k in range(4):
        a(f"s_waitcnt lgkmcnt({3-k})")
        a(f"buffer_store_dwordx4 v[{KD+4*k}:{KD+4*k+3}], v{V_VST}, s[{S_WS}:{S_WS+3}], s83 offen sc1")
        if k < 3:
            a("s_add_u32 s83, s83, 0x1000")


def poll(a, tag, masked, pre_barrier):
    a(f"v_mov_b32 v{V_T+2}, {NSLOT*SLOTB + 4096 + 64 * int(tag)}")
    a("s_cmp_lg_u32 s32, 0")
    a(f"s_cbranch_scc1 L_pw{tag}")
    a(f"s_mov_b32 s{S_MODE}, 1")
    a(f"s_cmp_lg_u32 s{S_HELPED}, 0")
    a(f"s_cbranch_scc1 L_pok{tag}")
    if not masked:
        a("s_cmp_eq_u64 s[40:41], 0")
        a(f"s_cbranch_scc1 L_pok{tag}")
    a(f"s_mov_b32 s{S_PCNT}, 0")
    a.label(f"L_poll{tag}")
    a(f"buffer_load_ubyte v{V_T}, v{V_POLL}, s[{S_DBG}:{S_DBG+3}], 0 offen sc1")
    a(f"s_waitcnt vmcnt(0)")
    if masked:
        a(f"v_cmp_eq_u32 s[40:41], 0, v{V_T}")
        a(f"v_or_b32 v{V_T}, v{V_T}, v{V_NEED}")
    a(f"v_cmp_eq_u32 vcc, 0, v{V_T}")
    a(f"s_add_u32 s{S_PCNT}, s{S_PCNT}, 1")
    a("s_nop 3")
    a(f"s_cbranch_vccz L_pdone{tag}")
    a(f"s_sleep {SLEEP}")
    a(f"s_cmp_lt_u32 s{S_PCNT}, {0 if ('selfhelp' + tag) in OPT else 6000}")
    a(f"s_cbranch_scc1 L_poll{tag}")
    a(f"s_mov_b32 s{S_MODE}, 2")
    a.label(f"L_pdone{tag}")
    if "noinv" not in OPT:
        a("buffer_inv sc1")
        a("s_waitcnt vmcnt(0)")
    a.label(f"L_pok{tag}")
    a(f"v_mov_b32 v{V_T}, s{S_MODE}")
    a(f"ds_write_b32 v{V_T+2}, v{V_T}")
    a.label(f"L_pw{tag}")
    a(pre_barrier)
    a("s_barrier")
    a(f"ds_read_b32 v{V_T}, v{V_T+2}")
    a("s_waitcnt lgkmcnt(0)")
    a(f"v_readfirstlane_b32 s{S_MODE}, v{V_T}")
    a("s_nop 3")
    a(f"s_cmp_eq_u32 s{S_MODE}, 2")
    a("s_cbranch_scc1 L_selfhelp")


SLEEP = int(os.environ.get("SLEEP", "1"))


def O_(qb, db):
    return (qb * 8 + db) * 4


def Q_(qb, ds):
    return 128 + (qb * 4 + ds) * 4


def F_(i):
    return 192 + 4 * i


def L_(qb):
    return 224 + 4 * qb


A_ONES = 240


def S_(kvb, qb):
    return (kvb * 4 + qb) * 4


NEGM = 64
PB = 96


def P_(par, s, qb):
    return PB + par * 32 + (s * 4 + qb) * 4


V_L16 = 164
V_AB = 165
V_DMA0 = 168
V_DMA1 = 169
V_T = 170
V_QOFF = 180
V_M = 182
V_R = 186
V_POLL = 190

S_WS, S_Q, S_OUT = 4, 8, 12
S_CNT = 16
S_DOFF = 17
S_SLB = 19
S_TMP = 20
S_HB = 22
S_W8K = 23
S_FLAG = 24
S_ROW = 35

NSLOT = 4
SLOTB = 32768
MF = "v_mfma_f32_16x16x32_bf16"
SEC_A, SEC_B, SEC_C = 0, 8192, 24576


class Sched:
    def __init__(self, a, lead=6):
        self.a = a
        self.pending = []
        self.time = 0
        self.lead = lead
        self.carry = [-1]

    def read(self, frag, addr_v, off):
        if "nord" not in OPT:
            self.a(f"ds_read_b128 a[{F_(frag)}:{F_(frag)+3}], v{addr_v} offset:{off}")
        self.pending.append((frag, self.time))

    def need(self, frags, extra=""):
        idx = None
        for i, (f, t) in enumerate(self.pending):
            if f in frags:
                idx = i
        if idx is None:
            return False
        while idx + 1 < len(self.pending) and self.time - self.pending[idx + 1][1] >= self.lead:
            idx += 1
        n = len(self.pending) - 1 - idx
        self.a(f"s_waitcnt lgkmcnt({n})")
        self.pending = self.pending[idx + 1:]
        return True


def elem(j, par_cur):
    if j < 16:
        e, par = 48 + j, par_cur
    else:
        e, par = j - 16, par_cur ^ 1
    B, r = e >> 2, e & 3
    kvb, qb = B >> 2, B & 3
    return S_(kvb, qb) + r, P_(par, kvb >> 1, qb) + (kvb & 1) * 2 + (r >> 1)


def exp_op(j, par):
    s, _ = elem(j, par)
    return f"v_exp_f32 v{s}, v{s}"


def cvt_op(j, par):
    if j < 0:
        j, par = j + 64, par ^ 1
    s, p = elem(j, par)
    return f"v_cvt_pk_bf16_f32 v{p}, v{s-1}, v{s}"


def dma_op(i):
    v = V_DMA0 if i < 4 else V_DMA1
    return f"buffer_load_dwordx4 v{v}, s[{S_WS}:{S_WS+3}], s{S_DOFF} offen offset:{1024*(i&3)} lds"


def dma_tile(a):
    for i in range(8):
        if i == 0:
            a(f"s_mov_b32 m0, s{S_SLB}")
            a("s_nop 0")
        if i == 4:
            a(f"s_add_u32 m0, s{S_SLB}, 0x1000")
            a("s_nop 0")
        a(dma_op(i))
    a(f"s_add_u32 s{S_DOFF}, s{S_DOFF}, 0x8000")
    a(f"s_and_b32 s{S_DOFF}, s{S_DOFF}, 0xfffff")
    a(f"s_add_u32 s{S_SLB}, s{S_SLB}, 0x8000")
    a(f"s_and_b32 s{S_SLB}, s{S_SLB}, 0x1ffff")


NS = 136
PV0 = 72
BAR = 11
DMA_SLOTS = [21, 37, 53, 69, 85, 101, 117, 131]
FREE_EVEN = {10, 46, 90, 134}
CVQ_MAX = 5


def mfma_info(k):
    if k < 64:
        kvb, qb, ds = k >> 4, (k >> 2) & 3, k & 3
        return ("qk", (kvb, qb, ds), 4 * (kvb & 1) + ds)
    if k < PV0:
        return ("sum", ((k - 64) >> 1, (k - 64) & 1), None)
    i = k - PV0
    db, qb, s = i >> 3, (i >> 1) & 3, i & 1
    return ("pv", (db, qb, s), (2 * db + s) & 7)


def gen_body(a, sc, par, last=False, dma=True):
    ubase = ((par ^ 1)) * SLOTB
    exq = list(range(16 if last else 64))
    cvq = list(sc.carry)
    rdq = []
    misc = []
    if not last and dma:
        misc.append((13, [f"s_mov_b32 m0, s{S_SLB}"]))
        misc.append((70, [f"s_add_u32 m0, s{S_SLB}, 0x1000"]))
        misc.append((132, [f"s_add_u32 s{S_DOFF}, s{S_DOFF}, 0x8000"]))
        misc.append((132, [f"s_and_b32 s{S_DOFF}, s{S_DOFF}, 0xfffff"]))
        misc.append((132, [f"s_add_u32 s{S_SLB}, s{S_SLB}, 0x8000"]))
        misc.append((132, [f"s_and_b32 s{S_SLB}, s{S_SLB}, 0x1ffff"]))
    dmai = 0
    pend_cv = []
    for k in range(NS):
        sc.time += 1
        kind, prm, f = mfma_info(k)
        units = 2
        if f is not None and not (last and kind == "qk"):
            assert all(r[0] != f for r in rdq), (k, f, rdq)
        if kind == "qk":
            kvb, qb, ds = prm
            if not last:
                if sc.need([f]):
                    pass
                d = S_(kvb, qb)
                c = f"v[{NEGM+4*qb}:{NEGM+4*qb+3}]" if ds == 0 else f"v[{d}:{d+3}]"
                a(f"{MF} v[{d}:{d+3}], a[{F_(f)}:{F_(f)+3}], a[{Q_(qb,ds)}:{Q_(qb,ds)+3}], {c}")
            if qb == 3:
                if kvb < 2:
                    if not last:
                        rdq.append((f, V_AB, ubase + SEC_A + (kvb * 4 + ds) * 1024))
                else:
                    rdq.append((f, V_AB, ubase + SEC_B + f * 1024))
        elif kind == "sum":
            qb, s = prm
            p = P_(par, s, qb)
            a(f"{MF} a[{L_(qb)}:{L_(qb)+3}], a[{A_ONES}:{A_ONES+3}], v[{p}:{p+3}], a[{L_(qb)}:{L_(qb)+3}]")
        else:
            db, qb, s = prm
            fv = 2 * db + s
            sc.need([f])
            p = P_(par, s, qb)
            o = O_(qb, db)
            a(f"{MF} a[{o}:{o+3}], a[{F_(f)}:{F_(f)+3}], v[{p}:{p+3}], a[{o}:{o+3}]")
            if qb == 3:
                if fv < 8:
                    rdq.append((f, V_AB, ubase + SEC_B + (fv + 8) * 1024))
                elif not last:
                    rdq.append((f, V_AB, ubase + SEC_C + (fv - 8) * 1024))
        cvq += pend_cv
        pend_cv = []
        if k == BAR:
            if last:
                a("s_waitcnt vmcnt(0) lgkmcnt(0)")
            else:
                a("s_waitcnt vmcnt(16) lgkmcnt(0)")
            sc.pending = []
            if "nobar" not in OPT:
                a("s_barrier")
            continue
        if k in DMA_SLOTS and not last and dma:
            if "nodma" not in OPT:
                a(dma_op(dmai))
            dmai += 1
            continue
        if (k & 1) == 0 and k not in FREE_EVEN:
            if exq:
                j = exq.pop(0)
                if "nosm" not in OPT and "noexp" not in OPT:
                    a(exp_op(j, par))
                if j & 1:
                    pend_cv.append(j)
                continue
        nxt = []
        for kk in (k + 1, k + 2):
            if kk < NS:
                kd, _, ff = mfma_info(kk)
                if ff is not None and not (last and kd == "qk"):
                    nxt.append(ff)
        light = 1
        if sc.need(nxt):
            light -= 1
        did_read = False
        if rdq and k > BAR:
            sc.read(*rdq.pop(0))
            did_read = True
        if did_read and not (len(cvq) >= CVQ_MAX and light > 0):
            pass
        elif cvq:
            if did_read:
                light -= 1
            j = cvq.pop(0)
            if last and k < 64:
                a("s_nop 0")
            if "nosm" not in OPT and "nocvt" not in OPT:
                a(cvt_op(j, par))
        else:
            light += 1
        while light > 0 and misc and misc[0][0] <= k:
            for t in misc.pop(0)[1]:
                a(t)
            light -= 1
    cvq += pend_cv
    if last:
        assert not cvq
    assert all(j >= 40 for j in cvq), cvq
    sc.carry = [j - 64 for j in cvq]
    for r in rdq:
        sc.read(*r)
    for m in misc:
        for t in m[1]:
            a(t)
    assert not exq
    if par == 0 and not last:
        a(f"v_xor_b32 v{V_AB}, 0x10000, v{V_AB}")


def gen_last(a, sc, par):
    ubase = (par ^ 1) * SLOTB
    a("s_waitcnt vmcnt(0) lgkmcnt(0)")
    a("s_barrier")
    sc.pending = []
    for db in range(8):
        sc.read(db, V_AB, ubase + SEC_B + (2 * db) * 1024)
    ops = [cvt_op(j, par) for j in sc.carry]
    for j in range(16):
        ops.append(exp_op(j, par))
        if j >= 2 and (j & 1) == 0:
            ops.append(cvt_op(j - 1, par))
    ops.append("s_nop 0")
    ops.append(cvt_op(15, par))
    npre = len(sc.carry) + 4
    for op in ops[:npre]:
        a(op)
    ops = ops[npre:]
    sc.time += 8
    for db in range(8):
        for qb in range(4):
            sc.time += 1
            sc.need([db])
            p = P_(par, 0, qb)
            o = O_(qb, db)
            a(f"{MF} a[{o}:{o+3}], a[{F_(db)}:{F_(db)+3}], v[{p}:{p+3}], a[{o}:{o+3}]")
            if ops:
                a(ops.pop(0))
            if qb == 3:
                sc.read(db, V_AB, ubase + SEC_B + (2 * db + 1) * 1024)
    assert not ops
    a("s_nop 1")
    for qb in range(4):
        for s_ in range(2):
            p = P_(par, s_, qb)
            a(f"{MF} a[{L_(qb)}:{L_(qb)+3}], a[{A_ONES}:{A_ONES+3}], v[{p}:{p+3}], a[{L_(qb)}:{L_(qb)+3}]")
    RR = 64
    CH = 72
    TB = 0
    pre = [f"s_mov_b32 s{S_TMP}, {f32bits(2.0**100):#x}", f"v_mov_b32 v{CH}, 0", f"v_mov_b32 v{CH+1}, 0"]
    for qb in range(4):
        pre.append(f"v_accvgpr_read_b32 v{V_R+qb}, a{L_(qb)}")
    pre += [f"v_max3_f32 v{V_T}, v{V_R}, v{V_R+1}, v{V_R+2}",
            f"v_max_f32 v{V_T}, v{V_T}, v{V_R+3}",
            f"v_add_f32 v{V_T+1}, v{V_R}, v{V_R+1}",
            f"v_add_f32 v{V_T+2}, v{V_R+2}, v{V_R+3}",
            f"v_cmp_nle_f32 s[40:41], v{V_T}, s{S_TMP}",
            f"v_cmp_u_f32 s[42:43], v{V_T+1}, v{V_T+2}"]
    for qb in range(4):
        pre.append(f"v_rcp_f32 v{RR+2*qb}, v{V_R+qb}")
    pre.append("s_nop 0")
    for qb in range(4):
        pre.append(f"v_mov_b32 v{RR+2*qb+1}, v{RR+2*qb}")

    def chunk(e, qb):
        t = TB + 8 * qb
        po = 32 + 4 * qb
        o = O_(qb, 2 * e)
        r = []
        for i in range(8):
            r.append(f"v_accvgpr_read_b32 v{t+i}, a{o+i}")
        for i in range(0, 8, 2):
            r.append(f"v_pk_mul_f32 v[{t+i}:{t+i+1}], v[{t+i}:{t+i+1}], v[{RR+2*qb}:{RR+2*qb+1}]")
        for i in range(0, 8, 2):
            r.append(f"v_pk_fma_f32 v[{CH}:{CH+1}], v[{t+i}:{t+i+1}], 0, v[{CH}:{CH+1}]")
        for i in range(0, 8, 2):
            r.append(f"v_cvt_pk_bf16_f32 v{po+(i>>1)}, v{t+i}, v{t+i+1}")
        r.append(f"buffer_store_dwordx4 v[{po}:{po+3}], v{V_QOFF}, s[{S_OUT}:{S_OUT+3}], s{S_ROW+qb} offen offset:{e*64}")
        return r
    work = []
    for db in range(8):
        for qb in range(4):
            sc.time += 1
            sc.need([db])
            p = P_(par, 1, qb)
            o = O_(qb, db)
            a(f"{MF} a[{o}:{o+3}], a[{F_(db)}:{F_(db)+3}], v[{p}:{p+3}], a[{o}:{o+3}]")
            idx = db * 4 + qb
            if idx == 3:
                work += pre
            if db >= 2 and (db & 1) == 0 and qb == 2:
                for q2 in range(4):
                    work += chunk((db >> 1) - 1, q2)
            if idx == 3:
                a("s_nop 7")
            for _ in range(10):
                if work:
                    a(work.pop(0))
    for w_ in work:
        a(w_)
    a("s_nop 7")
    for q2 in range(4):
        for w_ in chunk(3, q2):
            a(w_)
    a(f"v_cmp_u_f32 vcc, v{CH}, v{CH+1}")
    a("s_or_b64 s[40:41], s[40:41], s[42:43]")
    a("s_or_b64 vcc, vcc, s[40:41]")
    if "nofb" not in OPT:
        a("s_cbranch_vccnz L_fallback")
    a("s_branch L_fin")


def rowmax(a, qb, m, extra=None):
    regs = [S_(kvb, qb) + r for kvb in range(4) for r in range(4)]
    if extra is None:
        a(f"v_max3_f32 v{m}, v{regs[0]}, v{regs[1]}, v{regs[2]}")
        for i in range(3, 15, 2):
            a(f"v_max3_f32 v{m}, v{m}, v{regs[i]}, v{regs[i+1]}")
        a(f"v_max_f32 v{m}, v{m}, v{regs[15]}")
    else:
        a(f"v_max3_f32 v{m}, v{regs[0]}, v{regs[1]}, v{extra}")
        for i in range(2, 16, 2):
            a(f"v_max3_f32 v{m}, v{m}, v{regs[i]}, v{regs[i+1]}")


def xlane_max(a, ms):
    for sw in ("v_permlane16_swap_b32", "v_permlane32_swap_b32"):
        for m in ms:
            a(f"v_mov_b32 v{m+1}, v{m}")
        a("s_nop 1")
        for m in ms:
            a(f"{sw} v{m}, v{m+1}")
        a("s_nop 1")
        for m in ms:
            a(f"v_max_f32 v{m}, v{m}, v{m+1}")


def gen_main(a):
    K = NAME + "_kernel"
    a.raw(".p2align 8")
    a.raw(f".globl {K}")
    a.raw(f".type {K},@function")
    a.label(K)
    a("s_cmp_ge_u32 s2, 256")
    a("s_cbranch_scc1 L_done")
    a("s_load_dwordx4 s[92:95], s[0:1], 0")
    a("s_load_dwordx4 s[96:99], s[0:1], 16")
    a("s_load_dwordx4 s[24:27], s[0:1], 32")
    a("s_load_dwordx4 s[28:31], s[0:1], 48")
    a("s_load_dwordx4 s[88:91], s[0:1], 64")
    if "tl" in OPT:
        a("s_memrealtime s[100:101]")
    a(f"v_lshrrev_b32 v{V_T}, 6, v0")
    a(f"v_and_b32 v{V_T+1}, 63, v0")
    a(f"v_readfirstlane_b32 s32, v{V_T}")
    if "scramble" in OPT:
        a("s_lshr_b32 s33, s2, 5")
        a("s_and_b32 s34, s2, 31")
    else:
        a("s_and_b32 s33, s2, 7")
        a("s_lshr_b32 s34, s2, 3")
    a(f"s_mov_b32 s{S_TILE}, s34")
    a(f"s_mov_b32 s{S_TASK}, s32")
    deq_lane_k(a, V_T + 1)
    a("s_waitcnt lgkmcnt(0)")
    srd(a, S_QK, 94, 0x800000)
    srd(a, S_KS, 98, 0x10000)
    srd(a, S_KZ, 24, 0x10000)
    srd(a, S_QV, 96, 0x800000)
    srd(a, S_VS, 26, 0x8000)
    srd(a, S_VZ, 28, 0x8000)
    deq_loads(a)
    def qloads():
        for qb in range(4):
            for ds in range(4):
                a(f"buffer_load_dwordx4 a[{Q_(qb,ds)}:{Q_(qb,ds)+3}], v{V_QOFF}, s[{S_Q}:{S_Q+3}], s{S_ROW+qb} offen offset:{64*ds}")
    srd(a, S_WS, 90, 0x10000000)
    srd(a, S_Q, 92, 0x1000000)
    srd(a, S_OUT, 30, 0x1000000)
    srd(a, S_DBG, 88, 256)
    deq_lane_v(a)
    a(f"v_lshlrev_b32 v{V_L16}, 4, v{V_T+1}")
    a("s_and_b32 s35, s34, 3")
    a("s_lshl_b32 s36, s33, 2")
    a("s_add_u32 s35, s35, s36")
    a("s_lshr_b32 s36, s34, 2")
    a("s_lshl_b32 s35, s35, 11")
    a("s_lshl_b32 s36, s36, 8")
    a("s_add_u32 s35, s35, s36")
    a("s_lshl_b32 s36, s32, 6")
    a("s_add_u32 s35, s35, s36")
    a("s_lshl_b32 s35, s35, 8")
    a("s_add_u32 s36, s35, 0x1000")
    a("s_add_u32 s37, s35, 0x2000")
    a("s_add_u32 s38, s35, 0x3000")
    a(f"s_lshl_b32 s{S_HB}, s33, 21")
    a(f"s_lshl_b32 s{S_W8K}, s32, 13")
    a(f"s_mov_b32 s{S_MASK}, 0xffff0000")
    a(f"s_mov_b32 s{S_CS}, {f32bits(math.log2(math.e) / math.sqrt(128.0)):#x}")
    a(f"s_mov_b32 s{S_CS+1}, s{S_CS}")
    a(f"s_mov_b32 s{S_FLAG}, 0")
    a(f"s_mov_b32 s{S_HELPED}, 0")
    deq_outoffs(a)
    a(f"v_lshlrev_b32 v{V_QOFF}, 8, v6")
    a(f"v_lshl_add_u32 v{V_QOFF}, v7, 4, v{V_QOFF}")
    if "lateq" not in OPT:
        qloads()
    a(f"s_add_u32 s39, s{S_HB}, s{S_W8K}")
    a(f"v_add_u32 v{V_DMA0}, s39, v{V_L16}")
    a(f"v_add_u32 v{V_DMA1}, 0x1000, v{V_DMA0}")
    a("s_lshl_b32 s39, s33, 5")
    a(f"v_add_u32 v{V_POLL}, s39, v8")
    a(f"v_subrev_u32 v{V_NEED}, s34, v8")
    a(f"v_add_u32 v{V_NEED}, -1, v{V_NEED}")
    a(f"v_and_b32 v{V_NEED}, 28, v{V_NEED}")
    a(f"s_xor_b32 s75, s{S_W8K}, 0x4000")
    a("s_lshr_b32 s75, s75, 1")
    a(f"v_add_u32 v{V_LW}, s75, v{V_L16}")
    a(f"v_mov_b32 v{V_AB}, v{V_L16}")
    for i in range(4):
        a(f"v_mov_b32 v{12+i}, 0")
    a(f"v_mov_b32 v{V_T}, 0x3f803f80")
    for i in range(4):
        a(f"v_accvgpr_write_b32 a{A_ONES+i}, v{V_T}")
    for i in range(8):
        a(f"v_mfma_f32_32x32x16_bf16 a[{16*i}:{16*i+15}], v[12:15], v[12:15], 0")
    a(f"v_mfma_f32_32x32x16_bf16 a[{L_(0)}:{L_(0)+15}], v[12:15], v[12:15], 0")
    if "tl" in OPT:
        a("s_memrealtime s[94:95]")
        a("s_waitcnt lgkmcnt(0)")
        a("v_mov_b32 v248, s94")
    deq_compute(a, "0", 0 if "lateq" in OPT else 16)
    if "tl" in OPT:
        a("s_memrealtime s[94:95]")
        a("s_waitcnt lgkmcnt(0)")
        a("v_mov_b32 v249, s94")
    if "lateq" in OPT:
        qloads()
        a("s_waitcnt vmcnt(16) lgkmcnt(0)")
    else:
        a("s_waitcnt vmcnt(0) lgkmcnt(0)")
    if "tl" in OPT:
        a("s_memrealtime s[94:95]")
        a("s_waitcnt lgkmcnt(0)")
        a("v_mov_b32 v250, s94")
    a("s_barrier")
    a("s_cmp_lg_u32 s32, 0")
    a("s_cbranch_scc1 L_pub_done")
    a(f"s_add_u32 s39, s39, s34")
    a(f"v_mov_b32 v{V_T}, 1")
    a(f"v_mov_b32 v{V_T+1}, s39")
    a("s_mov_b64 exec, 1")
    a(f"buffer_store_byte v{V_T}, v{V_T+1}, s[{S_DBG}:{S_DBG+3}], 0 offen sc1")
    a("s_mov_b64 exec, -1")
    a.label("L_pub_done")
    a.label("L_go")
    sc = Sched(a)
    for f in range(8):
        sc.read(f, V_AB, SEC_B + f * 1024)
    for k in range(64):
        sc.time += 1
        kvb, qb, ds = k >> 4, (k >> 2) & 3, k & 3
        f = 4 * (kvb & 1) + ds
        sc.need([f])
        d = S_(kvb, qb)
        c = "0" if ds == 0 else f"v[{d}:{d+3}]"
        a(f"{MF} v[{d}:{d+3}], a[{F_(f)}:{F_(f)+3}], a[{Q_(qb,ds)}:{Q_(qb,ds)+3}], {c}")
        if qb == 3 and kvb < 2:
            sc.read(f, V_AB, SEC_A + (kvb * 4 + ds) * 1024)
    a("s_nop 15")
    ms = [V_T + 2 * qb for qb in range(4)]
    for qb in range(4):
        rowmax(a, qb, ms[qb])
    xlane_max(a, ms)
    for qb in range(4):
        for r in range(4):
            a(f"v_sub_f32 v{NEGM+4*qb+r}, 0, v{ms[qb]}")
    for kvb in range(4):
        for qb in range(4):
            for r in range(4):
                s = S_(kvb, qb) + r
                a(f"v_add_f32 v{s}, v{s}, v{NEGM+4*qb}")
    for j in range(16, 64):
        a(exp_op(j, 1))
        if (j & 1) == 0 and j > 16:
            a(cvt_op(j - 1, 1))
    a("s_nop 0")
    a(cvt_op(63, 1))
    poll(a, "1", True, "s_waitcnt lgkmcnt(0)")
    if "tl" in OPT:
        a("s_memrealtime s[94:95]")
        a("s_waitcnt lgkmcnt(0)")
        a("v_mov_b32 v251, s94")
    a(f"s_lshl_b32 s{S_DOFF}, s34, 15")
    a(f"s_lshr_b32 s75, s{S_W8K}, 2")
    a(f"s_add_u32 m0, s75, {SEC_C}")
    a(f"s_sub_u32 s75, s75, s{S_W8K}")
    a(f"s_add_u32 s75, s75, {SEC_C}")
    a(f"s_add_u32 s75, s75, s{S_DOFF}")
    for i in range(2):
        a(f"buffer_load_dwordx4 v{V_DMA0}, s[{S_WS}:{S_WS+3}], s75 offen offset:{1024*i} lds")
    a(f"s_add_u32 s{S_DOFF}, s{S_DOFF}, 0x8000")
    a(f"s_and_b32 s{S_DOFF}, s{S_DOFF}, 0xfffff")
    a(f"s_add_u32 s{S_SLB}, s{S_W8K}, 0x8000")
    dma_tile(a)
    dma_tile(a)
    dma_tile(a)
    if "tl" in OPT:
        a("s_memrealtime s[74:75]")
        a("s_waitcnt lgkmcnt(0)")
    poll(a, "2", False, "s_waitcnt vmcnt(24) lgkmcnt(0)")
    for f in range(8):
        sc.read(f, V_AB, SEC_C + f * 1024)
    a("s_waitcnt lgkmcnt(0)")
    scratch = Asm()
    sc2 = Sched(scratch)
    for _ in range(3):
        gen_body(scratch, sc2, 0)
        gen_body(scratch, sc2, 1)
    state0 = (list(sc2.carry), [(f, sc2.time - t) for f, t in sc2.pending])
    sc2.a = a
    sc = sc2
    a(f"s_mov_b32 s{S_CNT}, 15")
    if "tl" in OPT:
        a("s_memrealtime s[76:77]")
        a("s_waitcnt lgkmcnt(0)")
    if "stamp" in OPT:
        a("s_memtime s[48:49]")
        a("s_memrealtime s[64:65]")
        a("s_waitcnt lgkmcnt(0)")
    a.raw(".p2align 6")
    a.label("L_loop")
    gen_body(a, sc, 0)
    gen_body(a, sc, 1)
    assert state0 == (list(sc.carry), [(f, sc.time - t) for f, t in sc.pending])
    a(f"s_sub_u32 s{S_CNT}, s{S_CNT}, 1")
    a(f"s_cmp_lg_u32 s{S_CNT}, 0")
    a("s_cbranch_scc1 L_loop")
    if "stamp" in OPT:
        a("s_memtime s[50:51]")
        a("s_memrealtime s[66:67]")
        a("s_waitcnt lgkmcnt(0)")
    if "tl" in OPT:
        a("s_memrealtime s[78:79]")
        a("s_waitcnt lgkmcnt(0)")
    gen_body(a, sc, 0, dma=False)
    if "oldlast" in OPT:
        gen_body(a, sc, 1, last=True)
    else:
        if "tl" in OPT:
            a("s_memrealtime s[80:81]")
            a("s_waitcnt lgkmcnt(0)")
        gen_last(a, sc, 1)
    a.label("L_epi")
    a("s_waitcnt vmcnt(0)")
    a("s_nop 15")
    a(f"s_mov_b32 s{S_TMP}, {f32bits(2.0**100):#x}")
    for qb in range(4):
        a(f"v_accvgpr_read_b32 v{V_R+qb}, a{L_(qb)}")
    a(f"v_max3_f32 v{V_T}, v{V_R}, v{V_R+1}, v{V_R+2}")
    a(f"v_max_f32 v{V_T}, v{V_T}, v{V_R+3}")
    a(f"v_add_f32 v{V_T+1}, v{V_R}, v{V_R+1}")
    a(f"v_add_f32 v{V_T+2}, v{V_R+2}, v{V_R+3}")
    a(f"v_cmp_nle_f32 s[40:41], v{V_T}, s{S_TMP}")
    a(f"v_cmp_u_f32 s[42:43], v{V_T+1}, v{V_T+2}")
    for qb in range(4):
        a(f"v_rcp_f32 v{V_R+qb}, v{V_R+qb}")
    a(f"v_mov_b32 v{V_T}, 0")
    a(f"v_mov_b32 v{V_T+1}, 0")
    for qb in range(4):
        for db in range(8):
            o = O_(qb, db)
            for r in range(0, 4, 2):
                t = 64 + ((db * 4 + r) & 7)
                a(f"v_accvgpr_read_b32 v{t}, a{o+r}")
                a(f"v_accvgpr_read_b32 v{t+1}, a{o+r+1}")
                a(f"v_mul_f32 v{t}, v{t}, v{V_R+qb}")
                a(f"v_mul_f32 v{t+1}, v{t+1}, v{V_R+qb}")
                a(f"v_fma_f32 v{V_T}, v{t}, 0, v{V_T}")
                a(f"v_fma_f32 v{V_T+1}, v{t+1}, 0, v{V_T+1}")
                a(f"v_cvt_pk_bf16_f32 v{qb*16+db*2+(r>>1)}, v{t}, v{t+1}")
    a(f"v_cmp_u_f32 vcc, v{V_T}, v{V_T+1}")
    a("s_or_b64 s[40:41], s[40:41], s[42:43]")
    a("s_or_b64 vcc, vcc, s[40:41]")
    a(f"s_cmp_lg_u32 s{S_FLAG}, 0")
    a("s_cbranch_scc1 L_store")
    if "nofb" not in OPT:
        a("s_cbranch_vccnz L_fallback")
    a.label("L_store")
    if "tl" in OPT and "oldlast" in OPT:
        a("s_memrealtime s[80:81]")
    for qb in range(4):
        for e in range(4):
            r = qb * 16 + e * 4
            a(f"buffer_store_dwordx4 v[{r}:{r+3}], v{V_QOFF}, s[{S_OUT}:{S_OUT+3}], s{S_ROW+qb} offen offset:{e*64}")
    a.label("L_fin")
    if "tl" in OPT:
        a("s_waitcnt vmcnt(0)")
        a("s_memrealtime s[82:83]")
        a("s_waitcnt lgkmcnt(0)")
        a("s_lshl_b32 s84, s2, 7")
        a("s_lshl_b32 s85, s32, 5")
        a("s_add_u32 s84, s84, s85")
        a("s_add_u32 s84, s84, 0x4100000")
        for i, r in enumerate((100, 74, 76, 78, 80, 82)):
            a(f"v_mov_b32 v{70+i}, s{r}")
        a("v_mov_b32 v76, v251")
        a("v_mov_b32 v77, 0")
        a("v_mov_b32 v78, 0")
        a("s_mov_b64 exec, 1")
        a(f"buffer_store_dwordx4 v[70:73], v78, s[{S_WS}:{S_WS+3}], s84 offen")
        a(f"buffer_store_dwordx4 v[74:77], v78, s[{S_WS}:{S_WS+3}], s84 offen offset:16")
        if "dbgtl" in OPT:
            a("s_mov_b64 exec, -1")
            a("v_subrev_u32 v60, s100, v249")
            a("v_subrev_u32 v61, s100, v251")
            a("v_subrev_u32 v62, s100, v72")
            a("v_subrev_u32 v63, s100, v75")
            a("s_mov_b64 exec, 1")
            a("s_and_b32 s85, s2, 63")
            a("s_lshr_b32 s86, s2, 6")
            a("s_cmp_lg_u32 s85, s86")
            a("s_cbranch_scc1 L_nodbg")
            a("s_cmp_lg_u32 s32, 0")
            a("s_cbranch_scc1 L_nodbg")
            a("s_lshl_b32 s86, s86, 4")
            a(f"buffer_store_dwordx4 v[60:63], v78, s[{S_DBG}:{S_DBG+3}], s86 offen")
            a.label("L_nodbg")
        a("s_add_u32 s84, s84, 0x100000")
        a(f"buffer_store_dwordx4 v[248:251], v78, s[{S_WS}:{S_WS+3}], s84 offen")
        a(f"buffer_store_dwordx4 v[252:255], v78, s[{S_WS}:{S_WS+3}], s84 offen offset:16")
    if "stamp" in OPT:
        a("s_memtime s[52:53]")
        a("s_memrealtime s[54:55]")
        a("s_waitcnt lgkmcnt(0)")
        a("s_sub_u32 s52, s52, s44")
        a("s_sub_u32 s54, s54, s46")
        a("s_sub_u32 s50, s50, s48")
        a("s_sub_u32 s48, s48, s44")
        a("s_sub_u32 s66, s66, s64")
        a("s_sub_u32 s64, s64, s46")
        srd(a, 60, 56, 256)
        a("s_lshl_b32 s58, s2, 5")
        a("s_cmp_ge_u32 s2, 8")
        a("s_cbranch_scc1 L_done")
        a("s_cmp_lg_u32 s32, 0")
        a("s_cbranch_scc1 L_done")
        a("s_nop 4")
        a("v_mov_b32 v70, s52")
        a("v_mov_b32 v71, s54")
        a("v_mov_b32 v72, s50")
        a("v_mov_b32 v73, s48")
        a("v_mov_b32 v74, 0")
        a("s_mov_b64 exec, 1")
        a("v_mov_b32 v76, s66")
        a("v_mov_b32 v77, s64")
        a("v_mov_b32 v78, 0")
        a("v_mov_b32 v79, 0")
        a("buffer_store_dwordx4 v[70:73], v74, s[60:63], s58 offen")
        a("buffer_store_dwordx4 v[76:79], v74, s[60:63], s58 offen offset:16")
    a.label("L_done")
    a("s_endpgm")

    a.label("L_selfhelp")
    a("s_waitcnt vmcnt(0) lgkmcnt(0)")
    a("s_barrier")
    a(f"s_mov_b32 s{S_HELPED}, 1")
    a(f"s_mov_b32 s{S_TILE}, 0")
    a.label("L_sh_tile")
    a(f"v_mov_b32 v{V_LW}, {NSLOT*SLOTB}")
    deq_loads(a)
    deq_outoffs(a)
    deq_compute(a, "1")
    a("s_waitcnt vmcnt(0) lgkmcnt(0)")
    a(f"s_add_u32 s{S_TILE}, s{S_TILE}, 1")
    a(f"s_cmp_lt_u32 s{S_TILE}, 32")
    a("s_cbranch_scc1 L_sh_tile")
    a("s_barrier")
    a("buffer_inv sc1")
    a("s_waitcnt vmcnt(0)")
    a("s_barrier")
    a("s_branch L_go")

    a.label("L_fallback")
    a("s_waitcnt vmcnt(0)")
    a(f"s_mov_b32 s{S_FLAG}, 1")
    for i in range(128):
        a(f"v_accvgpr_write_b32 a{i}, 0")
    for i in range(16):
        a(f"v_accvgpr_write_b32 a{L_(0)+i}, 0")
    for qb in range(4):
        a(f"v_mov_b32 v{V_M+qb}, {f32bits(-3.0e38):#x}")
    a("s_mov_b32 s39, 0")
    a(f"s_mov_b32 s{S_CNT}, 32")
    a.label("L_fb_loop")

    def fb_load8(delta):
        a(f"s_add_u32 s{S_DOFF}, s39, {delta & 0xffffffff:#x}")
        a(f"s_and_b32 s{S_DOFF}, s{S_DOFF}, 0xfffff")
        a(f"s_add_u32 s{S_DOFF}, s{S_DOFF}, s{S_HB}")
        for q4 in range(2):
            for i in range(4):
                f = q4 * 4 + i
                a(f"buffer_load_dwordx4 a[{F_(f)}:{F_(f)+3}], v{V_L16}, s[{S_WS}:{S_WS+3}], s{S_DOFF} offen offset:{1024*i}")
            a(f"s_add_u32 s{S_DOFF}, s{S_DOFF}, 0x1000")
        a("s_waitcnt vmcnt(0)")
    for half in range(2):
        fb_load8(-8192 if half == 0 else 0)
        for kv2 in range(2):
            kvb = half * 2 + kv2
            for qb in range(4):
                d = S_(kvb, qb)
                for ds in range(4):
                    f = kv2 * 4 + ds
                    c = "0" if ds == 0 else f"v[{d}:{d+3}]"
                    a(f"{MF} v[{d}:{d+3}], a[{F_(f)}:{F_(f)+3}], a[{Q_(qb,ds)}:{Q_(qb,ds)+3}], {c}")
        a("s_nop 15")
    for qb in range(4):
        rowmax(a, qb, ms[qb], extra=V_M + qb)
    xlane_max(a, ms)
    for qb in range(4):
        m = ms[qb]
        al = m + 1
        a(f"v_sub_f32 v{al}, v{V_M+qb}, v{m}")
        a(f"v_exp_f32 v{al}, v{al}")
        a(f"v_mov_b32 v{V_M+qb}, v{m}")
        regs = [O_(qb, db) + r for db in range(8) for r in range(4)] + [L_(qb) + r for r in range(4)]
        for o in regs:
            a(f"v_accvgpr_read_b32 v{V_T+8}, a{o}")
            a(f"v_mul_f32 v{V_T+8}, v{V_T+8}, v{al}")
            a(f"v_accvgpr_write_b32 a{o}, v{V_T+8}")
    for kvb in range(4):
        for qb in range(4):
            for r in range(4):
                s = S_(kvb, qb) + r
                a(f"v_sub_f32 v{s}, v{s}, v{ms[qb]}")
    for s in range(64):
        a(f"v_exp_f32 v{s}, v{s}")
    a("s_nop 0")
    for kvb in range(4):
        for qb in range(4):
            for r in range(0, 4, 2):
                s = S_(kvb, qb) + r
                p = P_(0, kvb >> 1, qb) + (kvb & 1) * 2 + (r >> 1)
                a(f"v_cvt_pk_bf16_f32 v{p}, v{s}, v{s+1}")
    a("s_nop 1")
    for qb in range(4):
        for s in range(2):
            p = P_(0, s, qb)
            a(f"{MF} a[{L_(qb)}:{L_(qb)+3}], a[{A_ONES}:{A_ONES+3}], v[{p}:{p+3}], a[{L_(qb)}:{L_(qb)+3}]")
    for half in range(2):
        fb_load8(SLOTB + SEC_B + half * 8192)
        for f in range(8):
            fv = half * 8 + f
            db, s = fv >> 1, fv & 1
            for qb in range(4):
                p = P_(0, s, qb)
                o = O_(qb, db)
                a(f"{MF} a[{o}:{o+3}], a[{F_(f)}:{F_(f)+3}], v[{p}:{p+3}], a[{o}:{o+3}]")
        a("s_nop 15")
    a(f"s_add_u32 s39, s39, {SLOTB}")
    a(f"s_sub_u32 s{S_CNT}, s{S_CNT}, 1")
    a(f"s_cmp_lg_u32 s{S_CNT}, 0")
    a("s_cbranch_scc1 L_fb_loop")
    a("s_branch L_epi")


def descriptor(a, name, vgpr, sgpr, accum):
    a.raw(f".amdhsa_kernel {name}")
    a.raw(f"  .amdhsa_next_free_vgpr {vgpr}")
    a.raw(f"  .amdhsa_next_free_sgpr {sgpr}")
    a.raw(f"  .amdhsa_accum_offset {accum}")
    a.raw("  .amdhsa_group_segment_fixed_size 0")
    a.raw("  .amdhsa_kernarg_size 80")
    a.raw("  .amdhsa_user_sgpr_count 2")
    a.raw("  .amdhsa_user_sgpr_kernarg_segment_ptr 1")
    a.raw("  .amdhsa_system_sgpr_workgroup_id_x 1")
    a.raw(".end_amdhsa_kernel")


def main():
    out = sys.argv[1] if len(sys.argv) > 1 else OUT
    a = Asm()
    a.raw(HEADER.rstrip("\n"))
    if "list" in OPT:
        a.raw(f"; @launch kernel={NAME}_kernel grid=(256,1,1) block=(256,1,1) lds={NSLOT*SLOTB+8192}")
    else:
        a.raw(f"; @launch grid=(256,1,1) block=(256,1,1) lds={NSLOT*SLOTB+8192}")
    a.raw('.amdgcn_target "amdgcn-amd-amdhsa--gfx950"')
    a.raw(".text")
    gen_main(a)
    a.raw('.section .rodata,"a"')
    a.raw(".p2align 6")
    descriptor(a, NAME + "_kernel", 512, 102, 256)
    open(out, "w").write(a.text())


if __name__ == "__main__":
    main()
```
